```python
import torch

def _softmax(x, axis=-1):
    return torch.softmax(x, dim=axis)

def _gelu(x):
    return torch.nn.functional.gelu(x, approximate='tanh')

def _silu(x):
    return torch.nn.functional.silu(x)

def _sigmoid(x):
    return torch.sigmoid(x)

def _layernorm(x, axis=-1, eps=1e-05):
    m = x.mean(dim=axis, keepdim=True)
    v = x.var(dim=axis, keepdim=True, unbiased=False)
    return (x - m) / torch.sqrt(v + eps)

def _scatter_add(tgt, idx, src, axis=0):
    return tgt.clone().index_add_(axis, idx, src)

def _segment_sum(src, seg, n):
    out = torch.zeros((n,) + src.shape[1:], dtype=src.dtype)
    return out.index_add_(0, seg, src)

def _pad(x, pw):
    flat = tuple((v for pair in reversed(pw) for v in pair))
    return torch.nn.functional.pad(x, flat)
kernel_name = 'parallel_sum__memory_aug_recurrent_mem_tr__mixer_channel_mlp__prompt'

def setup_inputs():

    _w = lambda a: (lambda t: t.to(torch.bfloat16) if t.is_floating_point() else t)(torch.as_tensor(a))

    def _A_setup():
        B, S, Dm = (1, 2048, 512)
        H, Dh = (32, 128)
        M, seg = (8, 32)
        seg = min(seg, S)
        S = S // seg * seg
        return {'x': _w((lambda *s: torch.randn(*s, dtype=torch.bfloat16) * 0.05)(B, S, Dm)), 'mem0': _w((lambda *s: torch.randn(*s, dtype=torch.bfloat16) * 0.2)(B, M, Dm)), 'Wq': _w((lambda *s: torch.randn(*s, dtype=torch.bfloat16) * 1.6)(Dm, H, Dh) * Dm ** (-0.5)), 'Wk': _w((lambda *s: torch.randn(*s, dtype=torch.bfloat16) * 1.6)(Dm, H, Dh) * Dm ** (-0.5)), 'Wv': _w((lambda *s: torch.randn(*s, dtype=torch.bfloat16) * 0.2)(Dm, H, Dh) * Dm ** (-0.5)), 'Wo': _w((lambda *s: torch.randn(*s, dtype=torch.bfloat16) * 0.2)(H, Dh, Dm) * (H * Dh) ** (-0.5)), 'seg_len': seg}
    _A_in = _A_setup()

    def _B_setup():
        B, S, D, F = (1, 2048, 512, 1792)
        return {'x': _w((lambda *s: torch.randn(*s, dtype=torch.bfloat16) * 0.05)(B, S, D)), 'w1': _w((lambda *s: torch.randn(*s, dtype=torch.bfloat16) * 0.8)(D, F) * D ** (-0.5)), 'b1': _w((lambda *s: torch.randn(*s, dtype=torch.bfloat16) * 0.4)(F)), 'w2': _w((lambda *s: torch.randn(*s, dtype=torch.bfloat16) * 0.05)(F, D) * F ** (-0.5)), 'b2': _w((lambda *s: torch.randn(*s, dtype=torch.bfloat16) * 0.05)(D))}
    _B_in = _B_setup()
    return {'A_x': _A_in['x'], 'A_mem0': _A_in['mem0'], 'A_Wq': _A_in['Wq'], 'A_Wk': _A_in['Wk'], 'A_Wv': _A_in['Wv'], 'A_Wo': _A_in['Wo'], 'A_seg_len': _A_in['seg_len'], 'B_x': _B_in['x'], 'B_w1': _B_in['w1'], 'B_b1': _B_in['b1'], 'B_w2': _B_in['w2'], 'B_b2': _B_in['b2']}

def reference(A_x, A_mem0, A_Wq, A_Wk, A_Wv, A_Wo, A_seg_len, B_x, B_w1, B_b1, B_w2, B_b2):

    def _A_ref(x, mem0, Wq, Wk, Wv, Wo, seg_len):
        B, S, Dm = x.shape
        H, Dh = (Wq.shape[1], Wq.shape[2])
        M = mem0.shape[1]
        scale = Dh ** (-0.5)
        n_seg = S // seg_len
        L = M + seg_len
        idx = torch.arange(L)
        mask = (idx[:, None] < M) | (idx[:, None] >= idx[None, :])
        mem = mem0
        outs = []
        for s in range(n_seg):
            xs = x[:, s * seg_len:(s + 1) * seg_len, :].clone()
            h = torch.concatenate([mem, xs], axis=1)
            q = torch.einsum('btd,dhe->bhte', h, Wq)
            k = torch.einsum('btd,dhe->bhte', h, Wk)
            v = torch.einsum('btd,dhe->bhte', h, Wv)
            scores = torch.einsum('bhqe,bhke->bhqk', q, k) * scale
            scores = torch.where(mask[None, None], scores, -1000000000.0)
            p = _softmax(scores, axis=-1)
            o = torch.einsum('bhqk,bhke->bhqe', p, v)
            o = torch.einsum('bhte,hed->btd', o, Wo)
            mem = o[:, :M, :].clone()
            outs.append(o[:, M:, :])
        return torch.concatenate(outs, axis=1)

    def _B_ref(x, w1, b1, w2, b2):
        y = _layernorm(x, axis=-1)
        h = _gelu(torch.einsum('bsd,df->bsf', y, w1) + b1)
        return torch.einsum('bsf,fd->bsd', h, w2) + b2
    x = A_x
    xn = _layernorm(x, axis=-1)
    return x + _A_ref(xn, A_mem0, A_Wq, A_Wk, A_Wv, A_Wo, A_seg_len) + _B_ref(xn, B_w1, B_b1, B_w2, B_b2)
```

```python
class Asm:
    def __init__(self):
        self.lines = []
        self.uid = 0
    def __call__(self, s=''):
        for ln in s.split('\n'):
            ln = ln.strip()
            if ln == '' : continue
            if ln.endswith(':') or ln.startswith('.') or ln.startswith(';'):
                self.lines.append(ln)
            else:
                self.lines.append('  ' + ln)
    def label(self, base):
        self.uid += 1
        return '%s_%d' % (base, self.uid)
    def text(self):
        return '\n'.join(self.lines) + '\n'

def v(i, n=1):
    return 'v%d' % i if n == 1 else 'v[%d:%d]' % (i, i + n - 1)
def a(i, n=1):
    return 'a%d' % i if n == 1 else 'a[%d:%d]' % (i, i + n - 1)
def s(i, n=1):
    return 's%d' % i if n == 1 else 's[%d:%d]' % (i, i + n - 1)
def r(i, n=1):
    if i < 256:
        assert i + n <= 256
        return v(i, n)
    return a(i - 256, n)

DPP = 'row_mask:0xf bank_mask:0xf'
def allreduce(A, op, reg, tmp, full=True):
    A(f's_nop 1')
    A(f'{op}_dpp {v(reg)}, {v(reg)}, {v(reg)} quad_perm:[1,0,3,2] {DPP}')
    A(f's_nop 1')
    A(f'{op}_dpp {v(reg)}, {v(reg)}, {v(reg)} quad_perm:[2,3,0,1] {DPP}')
    A(f's_nop 1')
    A(f'{op}_dpp {v(reg)}, {v(reg)}, {v(reg)} row_half_mirror {DPP}')
    A(f's_nop 1')
    A(f'{op}_dpp {v(reg)}, {v(reg)}, {v(reg)} row_mirror {DPP}')
    A(f'v_mov_b32 {v(tmp)}, {v(reg)}')
    A(f's_nop 1')
    A(f'v_permlane16_swap_b32 {v(reg)}, {v(tmp)}')
    A(f's_nop 1')
    A(f'{op} {v(reg)}, {v(reg)}, {v(tmp)}')
    A(f'v_mov_b32 {v(tmp)}, {v(reg)}')
    A(f's_nop 1')
    A(f'v_permlane32_swap_b32 {v(reg)}, {v(tmp)}')
    A(f's_nop 1')
    A(f'{op} {v(reg)}, {v(reg)}, {v(tmp)}')

def kernel_header(A, name):
    A('.text')
    A(f'.globl {name}')
    A('.p2align 8')
    A(f'.type {name},@function')
    A(f'{name}:')

def kernel_desc(A, name, vgpr, sgpr, accum):
    A('.section .rodata,"a"')
    A('.p2align 6')
    A(f'.amdhsa_kernel {name}')
    A(f'.amdhsa_next_free_vgpr {vgpr}')
    A(f'.amdhsa_next_free_sgpr {sgpr}')
    A(f'.amdhsa_accum_offset {accum}')
    A('.amdhsa_group_segment_fixed_size 0')
    A('.amdhsa_kernarg_size 120')
    A('.amdhsa_user_sgpr_count 2')
    A('.amdhsa_user_sgpr_kernarg_segment_ptr 1')
    A('.amdhsa_system_sgpr_workgroup_id_x 1')
    A('.amdhsa_float_denorm_mode_32 3')
    A('.end_amdhsa_kernel')
```

```python
from asmlib import *
from layout import *
from k_common import *

L_WQ = 0
L_KX = 131072
L_VX = L_KX + 8192
L_MS = L_VX + 8192
MS_RS = 1088
L_Q = L_MS + 8 * MS_RS
QK_RS = 288
L_K = L_Q + 8 * QK_RS
L_OX = L_K + 8 * QK_RS
L_ROLE = L_OX + 8 * QK_RS
LDS_TOTAL = 163840
assert L_ROLE + 64 <= LDS_TOTAL

(V_IDX, V_MSR, V_MSW, V_L16, V_QKW, V_QKR, V_KX0, V_KX1, V_KX2, V_KX3, V_VXR, V_KXG0, V_KXG1,
 V_VTG, V_P1S, V_MST, V_OXW, V_OXR, V_WQ, V_KMS, V_VMS) = range(1, 22)
V_KMR = 0
V_MST0 = 4
V_T0, V_T1 = 22, 23
V_MF = 24
V_AQ = 56
V_PL = 64
V_KF = 64
V_VC = 64
V_KMF = 80
V_QF = 96
V_AK = 112
V_AV = 120
WO_BASE = 128

S_WQ, S_WK, S_WV, S_WOP = 16, 18, 20, 22
S_KB, S_VTB = 24, 26
S_P1S = 28
S_P1L = 32
S_MRD, S_MWR, S_MRS = 40, 42, 44
S_KM, S_VM = 46, 48
S_STEP, S_TAG = 50, 51
S_FLG = 52
S_C1 = 54
S_TS = 56
S_EX = 58
S_KXL = 60

def wk_reg(X, par, ks):
    return 256 + ((X * 2 + par) * 8 + ks) * 8
def wo_reg(tt, ks):
    return WO_BASE + (tt * 2 + ks) * 8

def nop(A, n):
    while n > 0:
        k = min(n, 16)
        A(f's_nop {k-1}')
        n -= k

NST = 12
class Chain:
    def __init__(self, A, prof=False, nsteps=64, opts=None):
        self.A = A; self.prof = prof; self.nsteps = nsteps; self.o = opts or {}

    def stamp(self, k):
        if not self.prof: return
        A = self.A
        A(f"{'s_memrealtime' if self.o.get('rt') else 's_memtime'} s[{64+2*k}:{64+2*k+1}]")
        if k == NST - 1:
            A('s_waitcnt lgkmcnt(0)')
            A(f's_mov_b64 s[{S_EX}:{S_EX+1}], exec')
            A('s_mov_b64 exec, 1')
            for kk in range(NST):
                A(f'v_mov_b32 v{V_T1}, s{64+2*kk}')
                A(f'global_store_dword v{V_MST0}, v{V_T1}, s[{S_TS}:{S_TS+1}] offset:{4*kk}')
                A('s_nop 1')
            A(f's_mov_b64 exec, s[{S_EX}:{S_EX+1}]')
            A(f's_add_u32 s{S_TS}, s{S_TS}, 64'); A(f's_addc_u32 s{S_TS+1}, s{S_TS+1}, 0')

    def consts(self):
        A = self.A
        l, c, G, i, half, t, u = 24, 25, 26, 27, 28, 29, 30
        W = f's{S_W}'
        A(f'v_and_b32 v{l}, 63, v0')
        A(f'v_and_b32 v{c}, 15, v0')
        A(f'v_lshrrev_b32 v{G}, 4, v{l}')
        A(f'v_lshrrev_b32 v{i}, 2, v{c}')
        A(f'v_lshlrev_b32 v{i}, 1, v{i}')
        A(f'v_and_b32 v{t}, 1, v{c}')
        A(f'v_add_u32 v{i}, v{i}, v{t}')
        A(f'v_bfe_u32 v{half}, v0, 1, 1')
        A(f'v_and_b32 v31, 7, v0')
        A(f'v_mov_b32 v{t}, 0x4444')
        A(f'v_mov_b32 v{u}, 0xeeee')
        A(f'v_cmp_eq_u32 vcc, 1, v{half}')
        A('s_nop 1')
        A(f'v_cndmask_b32 v{V_IDX}, v{t}, v{u}, vcc')
        A(f'v_mul_u32_u24 v{t}, {MS_RS}, v{i}')
        A(f'v_lshl_add_u32 v{t}, v{G}, 5, v{t}')
        A(f'v_lshl_add_u32 v{t}, v{half}, 4, v{t}')
        A(f'v_add_u32 v{V_MSR}, {L_MS}, v{t}')
        A(f'v_lshlrev_b32 v{V_L16}, 4, v{l}')
        A(f's_mul_i32 s13, {W}, {2*MS_RS}')
        A(f's_add_u32 s13, s13, {L_MS}')
        A(f'v_add_u32 v{V_MSW}, s13, v{V_L16}')
        A(f's_lshl_b32 s13, {W}, 15')
        A(f'v_add_u32 v{V_WQ}, s13, v{V_L16}')
        A(f'v_lshlrev_b32 v{t}, 1, v{G}')
        A(f'v_lshlrev_b32 v{u}, 8, v{t}')
        A(f'v_lshl_add_u32 v{u}, v{c}, 2, v{u}')
        A(f's_lshl_b32 s13, {W}, 6')
        A(f'v_add_u32 v{V_KMS}, s13, v{u}')
        A(f'v_mul_u32_u24 v{u}, {QK_RS}, v{t}')
        A(f'v_lshl_add_u32 v{u}, v{c}, 2, v{u}')
        A(f's_add_u32 s13, s13, {L_Q}')
        A(f'v_add_u32 v{V_QKW}, s13, v{u}')
        A(f'v_mul_u32_u24 v{u}, {QK_RS}, v31')
        A(f'v_lshl_add_u32 v{t}, v{G}, 4, v{u}')
        A(f'v_add_u32 v{V_QKR}, {L_Q}, v{t}')
        A(f's_lshl_b32 s13, {W}, 6')
        A(f's_add_u32 s13, s13, {L_OX}')
        A(f'v_add_u32 v{V_OXW}, s13, v{t}')
        A(f'v_mul_u32_u24 v{u}, {QK_RS}, v{i}')
        A(f'v_lshl_add_u32 v{t}, v{G}, 4, v{u}')
        A(f'v_add_u32 v{V_KMR}, {L_K}, v{t}')
        A(f'v_lshl_add_u32 v{t}, v{G}, 5, v{u}')
        A(f'v_lshl_add_u32 v{t}, v{half}, 4, v{t}')
        A(f'v_add_u32 v{V_OXR}, {L_OX}, v{t}')
        A(f'v_and_b32 v{t}, 3, v{c}')
        A(f'v_xor_b32 v{t}, v{t}, v{G}')
        A(f'v_and_b32 v{u}, 12, v{c}')
        A(f'v_or_b32 v{t}, v{t}, v{u}')
        A(f'v_lshlrev_b32 v{t}, 4, v{t}')
        A(f'v_lshl_add_u32 v{t}, v{c}, 8, v{t}')
        for ks in range(4):
            A(f'v_xor_b32 v{u}, {ks << 6}, v{t}')
            A(f'v_add_u32 v{V_KX0+ks}, {L_KX}, v{u}')
        A(f'v_bfe_u32 v{t}, v{c}, 1, 2')
        A(f'v_xor_b32 v{t}, v{t}, v{G}')
        A(f'v_lshlrev_b32 v{t}, 4, v{t}')
        A(f'v_lshl_add_u32 v{t}, v{c}, 6, v{t}')
        A(f's_lshl_b32 s13, {W}, 11')
        A(f's_add_u32 s13, s13, {L_VX}')
        A(f'v_add_u32 v{V_VXR}, s13, v{t}')
        A(f'v_lshrrev_b32 v{t}, 2, v{l}')
        A(f'v_bfe_u32 v{u}, v{l}, 3, 2')
        A(f'v_xor_b32 v{u}, v{u}, v{l}')
        A(f'v_and_b32 v{u}, 3, v{u}')
        A(f'v_lshlrev_b32 v{u}, 4, v{u}')
        A(f'v_lshl_add_u32 v{t}, v{t}, 6, v{u}')
        A(f's_lshl_b32 s13, {W}, 11')
        A(f'v_add_u32 v{V_VTG}, s13, v{t}')
        for uu in range(2):
            A(f's_lshl_b32 s13, {W}, 3')
            A(f's_add_u32 s13, s13, {4*uu}')
            A(f'v_add_u32 v{t}, s13, v{G}')
            A(f'v_and_b32 v{u}, 15, v{t}')
            A(f'v_xor_b32 v{u}, v{u}, v{c}')
            A(f'v_lshlrev_b32 v{u}, 4, v{u}')
            A(f'v_lshl_add_u32 v{V_KXG0+uu}, v{t}, 13, v{u}')
        A(f'v_lshlrev_b32 v{t}, 13, v{G}')
        A(f'v_lshl_add_u32 v{V_P1S}, v{c}, 4, v{t}')
        A(f'v_lshlrev_b32 v{t}, 5, v{c}')
        A(f'v_lshl_add_u32 v{t}, v{G}, 3, v{t}')
        A(f's_lshl_b32 s13, {W}, 10')
        A(f'v_add_u32 v{V_VMS}, s13, v{t}')
        A(f'v_lshlrev_b32 v{t}, 10, v{c}')
        A(f'v_lshl_add_u32 v{t}, v{G}, 3, v{t}')
        A(f's_lshl_b32 s13, s{S_J}, 5')
        A(f'v_add_u32 v{V_MST}, s13, v{t}')
        A(f's_lshl_b32 s{S_KXL}, {W}, 11')
        A(f's_add_u32 s{S_KXL+1}, s{S_KXL}, {L_VX}')
        A(f's_add_u32 s{S_KXL}, s{S_KXL}, {L_KX}')

    def startup(self):
        A = self.A
        W = f's{S_W}'
        A(f's_load_dwordx2 s[{S_WQ}:{S_WQ+1}], s[0:1], 16')
        A(f's_load_dwordx2 s[{S_WK}:{S_WK+1}], s[0:1], 24')
        A(f's_load_dwordx2 s[{S_WV}:{S_WV+1}], s[0:1], 32')
        A(f's_load_dwordx2 s[{S_WOP}:{S_WOP+1}], s[0:1], 40')
        A(f's_load_dwordx2 s[{S_KM}:{S_KM+1}], s[0:1], 8')
        self.consts()
        A('s_waitcnt lgkmcnt(0)')
        l, c, G, t, u = 24, 25, 26, 29, 30
        VD = 31; VR = 32; VQD = 34; VQR = 35; VO = 36; VRO = 40
        MR = 48
        A(f's_lshl_b32 s13, {W}, 11')
        A(f'v_add_u32 v{t}, s13, v{V_L16}')
        A(f'global_load_dwordx4 v[{MR}:{MR+3}], v{t}, s[{S_KM}:{S_KM+1}]')
        A(f'global_load_dwordx4 v[{MR+4}:{MR+7}], v{t}, s[{S_KM}:{S_KM+1}] offset:1024')
        A(f'v_lshrrev_b32 v{t}, 1, v{G}')
        A(f'v_lshlrev_b32 v{t}, 3, v{t}')
        A(f'v_and_b32 v{u}, 1, v{G}')
        A(f'v_add_u32 v{t}, v{t}, v{u}')
        A(f'v_lshlrev_b32 v{t}, 13, v{t}')
        A(f'v_lshlrev_b32 v{u}, 2, v{G}')
        A(f'v_xor_b32 v{u}, v{u}, v{c}')
        A(f'v_lshl_add_u32 v{VD}, v{u}, 4, v{t}')
        A(f's_lshl_b32 s13, s{S_J}, 8')
        A(f's_lshl_b32 s14, {W}, 19')
        A(f's_add_u32 s14, s14, s13')
        for sp in (S_WK, S_WV):
            A(f's_add_u32 s{sp}, s{sp}, s14'); A(f's_addc_u32 s{sp+1}, s{sp+1}, 0')
        A(f's_lshl_b32 s14, {W}, 6')
        A(f's_add_u32 s14, s14, s13')
        A(f's_add_u32 s{S_WQ}, s{S_WQ}, s14'); A(f's_addc_u32 s{S_WQ+1}, s{S_WQ+1}, 0')
        A(f'v_lshrrev_b32 v{t}, 2, v{c}')
        A(f'v_lshl_add_u32 v{u}, v{G}, 3, v{t}')
        A(f'v_lshlrev_b32 v{u}, 8, v{u}')
        A(f'v_xor_b32 v{t}, {W}, v{t}')
        A(f'v_lshl_add_u32 v{u}, v{t}, 6, v{u}')
        A(f'v_and_b32 v{t}, 3, v{c}')
        A(f'v_lshl_add_u32 v{VR}, v{t}, 3, v{u}')
        A(f'v_add_u32 v{VR+1}, 0x10000, v{VR}')
        A(f'v_bfe_u32 v{t}, v{l}, 3, 1')
        A(f'v_lshlrev_b32 v{t}, 3, v{t}')
        A(f'v_lshrrev_b32 v{u}, 4, v{l}')
        A(f'v_lshl_add_u32 v{t}, v{u}, 1, v{t}')
        A(f'v_bfe_u32 v{u}, v{l}, 2, 1')
        A(f'v_add_u32 v{t}, v{t}, v{u}')
        A(f'v_lshlrev_b32 v{t}, 13, v{t}')
        A(f'v_and_b32 v{u}, 3, v{l}')
        A(f'v_lshl_add_u32 v{VQD}, v{u}, 4, v{t}')
        A(f'v_lshrrev_b32 v{t}, 2, v{c}')
        A(f'v_lshl_add_u32 v{u}, v{G}, 3, v{t}')
        A(f'v_lshlrev_b32 v{u}, 6, v{u}')
        A(f'v_and_b32 v{t}, 3, v{c}')
        A(f'v_lshl_add_u32 v{u}, v{t}, 3, v{u}')
        A(f's_lshl_b32 s13, {W}, 15')
        A(f'v_add_u32 v{VQR}, s13, v{u}')
        for x in range(4):
            A(f'v_xor_b32 v{t}, {x << 2}, v{l}')
            A(f'v_lshlrev_b32 v{VO+x}, 4, v{t}')
        A(f's_lshl_b32 s13, s{S_J}, 7')
        A(f's_lshr_b32 s14, {W}, 1'); A('s_lshl_b32 s14, s14, 5'); A('s_add_u32 s13, s13, s14')
        A(f's_and_b32 s14, {W}, 1'); A('s_lshl_b32 s14, s14, 3'); A('s_add_u32 s13, s13, s14')
        A('s_lshl_b32 s13, s13, 10')
        A(f's_add_u32 s{S_WOP}, s{S_WOP}, s13'); A(f's_addc_u32 s{S_WOP+1}, s{S_WOP+1}, 0')
        A(f'v_lshrrev_b32 v{t}, 2, v{c}')
        A(f'v_lshl_add_u32 v{u}, v{G}, 3, v{t}')
        A(f'v_lshlrev_b32 v{u}, 10, v{u}')
        A(f'v_lshl_add_u32 v{u}, v{t}, 6, v{u}')
        A(f'v_and_b32 v{t}, 3, v{c}')
        A(f'v_lshl_add_u32 v{u}, v{t}, 3, v{u}')
        A(f's_lshl_b32 s13, {W}, 8')
        A(f'v_add_u32 v{u}, s13, v{u}')
        for x in range(4):
            A(f'v_xor_b32 v{VRO+x}, {x << 6}, v{u}')
            A(f'v_add_u32 v{VRO+4+x}, 0x10000, v{VRO+x}')

        def issue_half(t_):
            A(f's_lshl_b32 s13, {W}, 14')
            if t_ & 1: A('s_add_u32 s13, s13, 0x10000')
            if t_ < 4:
                sp = (S_WK, S_WV)[t_ >> 1]
                for uu in range(16):
                    off = (256 * (t_ & 1) + 16 * (uu >> 2) + 2 * (uu & 3)) * 8192
                    A(f's_add_u32 s14, s{sp}, {off}'); A(f's_addc_u32 s15, s{sp+1}, 0')
                    A(f's_mov_b32 m0, s13')
                    A('s_add_u32 s13, s13, 1024')
                    A(f'global_load_lds_dwordx4 v{VD}, s[14:15]')
            else:
                ks = t_ & 1
                for uu in range(16):
                    g = uu >> 2; hf = (uu >> 1) & 1; b = uu & 1
                    e = 64 * ks + 16 * (g >> 1) + 4 * hf + 2 * (g & 1) + b
                    A(f's_add_u32 s14, s{S_WOP}, {e*1024}'); A(f's_addc_u32 s15, s{S_WOP+1}, 0')
                    A(f's_mov_b32 m0, s13')
                    A('s_add_u32 s13, s13, 1024')
                    A(f'global_load_lds_dwordx4 v{VO + (uu & 3)}, s[14:15]')
        def issue_wq():
            A(f's_lshl_b32 s13, {W}, 15')
            for u_ in range(32):
                A(f's_add_u32 s14, s{S_WQ}, {u_*16*8192}'); A(f's_addc_u32 s15, s{S_WQ+1}, 0')
                A(f's_mov_b32 m0, s13')
                A('s_add_u32 s13, s13, 1024')
                A(f'global_load_lds_dwordx4 v{VQD}, s[14:15]')
        issue_half(0)
        issue_half(1)
        A('s_waitcnt vmcnt(32)')
        A(f'ds_write_b128 v{V_MSW}, v[{MR}:{MR+3}]')
        A(f'ds_write_b128 v{V_MSW}, v[{MR+4}:{MR+7}] offset:{MS_RS}')
        for t_ in range(6):
            if t_ < 5:
                A('s_waitcnt vmcnt(16)')
            else:
                L1 = A.label('Lst5a'); L2 = A.label('Lst5b')
                A(f's_cmp_lt_u32 {W}, 2')
                A(f's_cbranch_scc1 {L1}')
                A('s_waitcnt vmcnt(0)')
                A(f's_branch {L2}')
                A(f'{L1}:')
                A('s_waitcnt vmcnt(32)')
                A(f'{L2}:')
            A('s_barrier')
            if t_ < 4:
                X = t_ >> 1
                for par in range(2):
                    for kl in range(4):
                        ks = 4 * (t_ & 1) + kl
                        base = wk_reg(X, par, ks)
                        for qd in range(4):
                            imm = (64 * kl + 32 * (qd >> 1) + 4 * (qd & 1)) * 256 + 32 * par
                            A(f'ds_read_b64_tr_b16 {r(base + 2*qd, 2)}, v{VR + (t_ & 1)} offset:{imm}')
                    A('s_waitcnt lgkmcnt(0)')
            else:
                ks = t_ & 1
                for tt in range(8):
                    base = wo_reg(tt, ks)
                    for qd in range(4):
                        imm = (32 * (qd >> 1) + 4 * (qd & 1)) * 1024 + 32 * (tt & 1)
                        A(f'ds_read_b64_tr_b16 {r(base + 2*qd, 2)}, v{VRO + 4*ks + (tt >> 1)} offset:{imm}')
                    if tt & 1: A('s_waitcnt lgkmcnt(0)')
            A('s_barrier')
            if t_ + 2 < 6:
                issue_half(t_ + 2)
            else:
                Ls = A.label('Lwq_skip')
                A(f's_cmp_ge_u32 {W}, 2' if t_ == 4 else f's_cmp_lt_u32 {W}, 2')
                A(f's_cbranch_scc1 {Ls}')
                issue_wq()
                A(f'{Ls}:')
        ws = f's{S_WS}', f's{S_WS+1}'
        def ptr(sp, off, mul_j=0, mul_w=0):
            A(f's_mov_b32 s13, {off}')
            if mul_j:
                A(f's_mul_i32 s14, s{S_J}, {mul_j}'); A('s_add_u32 s13, s13, s14')
            if mul_w:
                A(f's_mul_i32 s14, {W}, {mul_w}'); A('s_add_u32 s13, s13, s14')
            A(f's_add_u32 s{sp}, {ws[0]}, s13'); A(f's_addc_u32 s{sp+1}, {ws[1]}, 0')
        ptr(S_KB, WS_K, mul_j=256)
        ptr(S_VTB, WS_VT, mul_j=8192)
        for p in range(2):
            ptr(S_P1S + 2*p, WS_P1 + 4*p*8192, mul_j=256, mul_w=8*8192)
        ptr(S_P1L, WS_P1, mul_j=8192)
        ptr(S_P1L + 2, WS_P1 + 4096, mul_j=8192)
        ptr(S_MRD, WS_MR)
        ptr(S_MWR, WS_MR + 8192)
        ptr(S_MRS, WS_MR + 16384)
        ptr(S_KM, WS_KM, mul_j=2048)
        ptr(S_VM, WS_VM, mul_j=4096)
        ptr(S_FLG, WS_SY + FLG_CHAIN, mul_j=16, mul_w=4)
        ptr(S_TS, WS_TS, mul_j=16384, mul_w=4096)
        A(f's_mov_b32 s{S_C1}, 0x3e0293ee')
        A(f's_mov_b32 s{S_C1+1}, 0x3e0293ee')
        A(f's_mov_b32 s{S_STEP}, 0')
        A(f's_mov_b32 s{S_TAG}, 1')
        A('s_mov_b32 s15, 0')
        self.wait_kv(15)
        self.prefetch()
        A('s_waitcnt vmcnt(0)')
        for ks in range(8):
            b = 64 + (ks & 1) * 16
            for par in range(2):
                for qd in range(4):
                    imm = (64 * ks + 32 * (qd >> 1) + 4 * (qd & 1)) * 64 + 32 * par
                    A(f'ds_read_b64_tr_b16 v[{b + par*8 + 2*qd}:{b + par*8 + 2*qd + 1}], v{VQR} offset:{imm}')
            A('s_waitcnt lgkmcnt(0)')
            for par in range(2):
                for hi in range(2):
                    A(f'ds_write_b128 v{V_WQ}, v[{b + par*8 + hi*4}:{b + par*8 + hi*4 + 3}] offset:{ks*4096 + (par*2+hi)*1024}')
        A('s_waitcnt lgkmcnt(0)')

    def prefetch(self):
        self.prefetch_k()
        self.prefetch_v()

    def smf(self, acc, afr, wfr):
        return f'v_smfmac_f32_16x16x64_bf16 v[{acc}:{acc+3}], v[{afr}:{afr+3}], {r(wfr, 8)}, v{V_IDX}'

    def wq_base(self, f):
        if f < 2: return V_MF + 16 + 8 * f
        if f < 10: return V_PL + 8 * (f - 2)
        return V_PL + 8 * (f - 10)
    def wq_read(self, f):
        ks, par = f >> 1, f & 1
        b = self.wq_base(f)
        return [f'ds_read_b128 v[{b+4*hi}:{b+4*hi+3}], v{V_WQ} offset:{ks*4096 + (par*2+hi)*1024}' for hi in range(2)]

    def post_qk(self, t0, t1, ldsoff):
        I = []
        I.append(f'v_pk_add_f32 v[{t0}:{t0+1}], v[{t0}:{t0+1}], v[{t0+2}:{t0+3}]')
        I.append(f'v_pk_add_f32 v[{t1}:{t1+1}], v[{t1}:{t1+1}], v[{t1+2}:{t1+3}]')
        I.append(f'v_cvt_pk_bf16_f32 v{t0}, v{t0}, v{t1}')
        I.append(f'v_cvt_pk_bf16_f32 v{t0+1}, v{t0+1}, v{t1+1}')
        I.append(f'ds_write_b32 v{V_QKW}, v{t0} offset:{ldsoff}')
        I.append(f'ds_write_b32 v{V_QKW}, v{t0+1} offset:{ldsoff + QK_RS}')
        return I

    def wait_kv(self, tt_sgpr):
        A = self.A
        if self.o.get('nokvwait'): return
        Lp = A.label('Lkv_p'); Ld = A.label('Lkv_d')
        A(f's_lshl_b32 s13, s{tt_sgpr}, 7')
        A(f's_lshl_b32 s14, s{S_J}, 2'); A('s_add_u32 s13, s13, s14')
        A(f's_add_u32 s13, s13, {WS_SY + FLG_KV}')
        A(f'v_mov_b32 v{V_T1}, s13')
        A(f'{Lp}:')
        A(f'global_load_dword v{V_T0}, v{V_T1}, s[{S_WS}:{S_WS+1}] sc1')
        A('s_waitcnt vmcnt(0)')
        A(f'v_cmp_gt_u32 vcc, 2, v{V_T0}')
        A(f's_cbranch_vccz {Ld}')
        A('s_sleep 4')
        spin_check(A, Lp, Ld)
        A(f'{Ld}:')

    def prefetch_k(self):
        A = self.A
        A(f's_mov_b32 m0, s{S_KXL}')
        A(f's_add_u32 s13, s{S_KXL}, 1024')
        A(f'global_load_lds_dwordx4 v{V_KXG0}, s[{S_KB}:{S_KB+1}] sc1')
        A('s_mov_b32 m0, s13')
        A('s_nop 0')
        A(f'global_load_lds_dwordx4 v{V_KXG1}, s[{S_KB}:{S_KB+1}] sc1')
        A(f's_add_u32 s{S_KB}, s{S_KB}, {32*8192}'); A(f's_addc_u32 s{S_KB+1}, s{S_KB+1}, 0')

    def prefetch_v(self):
        A = self.A
        A(f's_mov_b32 m0, s{S_KXL+1}')
        A('s_nop 0')
        A(f'global_load_lds_dwordx4 v{V_VTG}, s[{S_VTB}:{S_VTB+1}] sc1')
        A(f'global_load_lds_dwordx4 v{V_VTG}, s[{S_VTB}:{S_VTB+1}] offset:1024 sc1')
        A(f's_add_u32 s{S_VTB}, s{S_VTB}, {32*8192}'); A(f's_addc_u32 s{S_VTB+1}, s{S_VTB+1}, 0')

    def idle_work(self):
        A = self.A
        for f in range(2, 10):
            for ins in self.wq_read(f): A(ins)
        for f in range(2):
            for ins in self.wq_read(f): A(ins)

    def step_loop(self, fast):
        A = self.A; o = self.o
        st = '' if fast else ' sc1'
        W = f's{S_W}'
        Lloop = A.label('Lchain_loop'); Lend = A.label('Lchain_end'); Lfirst = A.label('Lchain_first')
        self.idle_work()
        for k in range(0, 8, 2):
            A(f'v_mov_b64 v[{V_AQ+k}:{V_AQ+k+1}], 0')
        A(f's_branch {Lfirst}')
        A(f'{Lloop}:')
        self.stamp(0)
        Lnc = A.label('Lnocons'); Lnc2 = A.label('Lnocons2')
        A(f's_cmp_lg_u32 {W}, 0')
        A(f's_cbranch_scc1 {Lnc}')
        SEL = V_AQ; RA = V_AQ + 4
        D = V_PL
        Lp = A.label('Lp1_poll'); Ld = A.label('Lp1_done')
        A(f'v_bfe_u32 v{V_T0}, v{V_L16}, 4, 1')
        A(f'v_mov_b32 v{V_T1}, 0x3f80')
        A(f'v_lshlrev_b32 v{V_T0}, 4, v{V_T0}')
        A(f'v_lshlrev_b32 v{V_T1}, v{V_T0}, v{V_T1}')
        A(f'v_bfe_u32 v{V_T0}, v{V_L16}, 5, 3')
        for d in range(4):
            A(f'v_cmp_eq_u32 vcc, {d}, v{V_T0}')
            A('s_nop 1')
            A(f'v_cndmask_b32 v{SEL+d}, 0, v{V_T1}, vcc')
        if o.get('d1', 0): A(f"s_sleep {o.get('d1', 0)}")
        A(f'{Lp}:')
        for q in range(8):
            A(f'global_load_dwordx4 v[{D+4*q}:{D+4*q+3}], v{V_L16}, s[{S_P1L+2*(q>>2)}:{S_P1L+2*(q>>2)+1}] offset:{(q&3)*1024} sc1')
        for q in range(8):
            A(f's_waitcnt vmcnt({7-q})')
            c_ = '0' if q == 0 else f'v[{RA}:{RA+3}]'
            A(f'v_mfma_f32_16x16x32_bf16 v[{RA}:{RA+3}], v[{D+4*q}:{D+4*q+3}], v[{SEL}:{SEL+3}], {c_}')
            if q == 0:
                A(f'v_xor_b32 v{V_T0}, s{S_TAG}, v{D}')
            else:
                A(f'v_xor_b32 v{V_T1}, s{S_TAG}, v{D+4*q}')
                A(f'v_or_b32 v{V_T0}, v{V_T0}, v{V_T1}')
        A(f'v_and_b32 v{V_T0}, 1, v{V_T0}')
        A(f'v_cmp_ne_u32 vcc, 0, v{V_T0}')
        A(f's_cbranch_vccz {Ld}')
        spin_check(A, Lp, Ld)
        A(f'{Ld}:')
        self.stamp(1)
        A('s_mov_b32 exec_lo, 0x00ff00ff')
        A('s_mov_b32 exec_hi, 0x00ff00ff')
        A(f'v_mov_b32 v{V_T0}, -1')
        A(f'v_mov_b32 v{V_T1}, -1')
        nop(A, 2)
        A(f'v_cvt_pk_bf16_f32 v{RA}, v{RA}, v{RA+1}')
        A(f'v_cvt_pk_bf16_f32 v{RA+1}, v{RA+2}, v{RA+3}')
        A(f'v_min_u32 v{RA}, -2, v{RA}')
        A(f'v_min_u32 v{RA+1}, -2, v{RA+1}')
        A(f'global_store_dwordx2 v{V_MST}, v[{RA}:{RA+1}], s[{S_MWR}:{S_MWR+1}]{st}')
        A(f'global_store_dwordx2 v{V_MST}, v[{V_T0}:{V_T0+1}], s[{S_MRD}:{S_MRD+1}]{st}')
        A('s_mov_b64 exec, -1')
        A(f'{Lnc}:')
        self.stamp(2)
        self.idle_work()
        A(f's_mov_b64 s[14:15], s[{S_MRD}:{S_MRD+1}]')
        A(f's_mov_b64 s[{S_MRD}:{S_MRD+1}], s[{S_MWR}:{S_MWR+1}]')
        A(f's_mov_b64 s[{S_MWR}:{S_MWR+1}], s[{S_MRS}:{S_MRS+1}]')
        A(f's_mov_b64 s[{S_MRS}:{S_MRS+1}], s[14:15]')
        A(f's_add_u32 s{S_STEP}, s{S_STEP}, 1')
        A(f's_xor_b32 s{S_TAG}, s{S_TAG}, 1')
        for k in range(0, 8, 2):
            A(f'v_mov_b64 v[{V_AQ+k}:{V_AQ+k+1}], 0')
        Lkv = A.label('Lkvskip')
        A(f's_cmp_lg_u32 {W}, 1'); A(f's_cbranch_scc1 {Lkv}')
        A(f's_add_u32 s15, s{S_STEP}, 1')
        A('s_and_b32 s13, s15, 3'); A('s_cmp_lg_u32 s13, 0'); A(f's_cbranch_scc1 {Lkv}')
        A('s_cmp_ge_u32 s15, 64'); A(f's_cbranch_scc1 {Lkv}')
        A('s_lshr_b32 s15, s15, 2')
        self.wait_kv(15)
        A(f'{Lkv}:')
        Lp = A.label('Lm_poll'); Ld = A.label('Lm_done')
        A(f's_lshl_b32 s13, {W}, 11')
        A(f's_add_u32 s14, s{S_MRD}, s13'); A(f's_addc_u32 s15, s{S_MRD+1}, 0')
        if o.get('d2', 0):
            Lsk = A.label('Ld2skip')
            A(f's_cmp_eq_u32 {W}, 0')
            A(f's_cbranch_scc1 {Lsk}')
            A(f"s_sleep {o.get('d2', 0)}")
            A(f'{Lsk}:')
        M = V_MF
        A(f'{Lp}:')
        A(f'global_load_dwordx4 v[{M}:{M+3}], v{V_L16}, s[14:15] sc1')
        A(f'global_load_dwordx4 v[{M+4}:{M+7}], v{V_L16}, s[14:15] offset:1024 sc1')
        A('s_waitcnt vmcnt(0)')
        A(f'v_max3_u32 v{V_T0}, v{M}, v{M+1}, v{M+2}')
        A(f'v_max3_u32 v{V_T1}, v{M+3}, v{M+4}, v{M+5}')
        A(f'v_max3_u32 v{V_T0}, v{V_T0}, v{M+6}, v{M+7}')
        A(f'v_max_u32 v{V_T0}, v{V_T0}, v{V_T1}')
        A(f'v_cmp_eq_u32 vcc, -1, v{V_T0}')
        A(f's_cbranch_vccz {Ld}')
        spin_check(A, Lp, Ld)
        A(f'{Ld}:')
        self.stamp(10)
        A(f'ds_write_b128 v{V_MSW}, v[{M}:{M+3}]')
        A(f'ds_write_b128 v{V_MSW}, v[{M+4}:{M+7}] offset:{MS_RS}')
        A(f'{Lfirst}:')
        A('s_waitcnt lgkmcnt(0)')
        A('s_barrier')
        self.stamp(3)
        def mfr(ks): return f'ds_read_b128 v[{V_MF+4*ks}:{V_MF+4*ks+3}], v{V_MSR} offset:{128*ks}'
        for ks in range(4): A(mfr(ks))
        if not o.get('nopub'):
            A(f'v_mov_b32 v{V_T0}, s{S_STEP}')
            A(f's_mov_b64 exec, 1')
            A(f'global_store_dword v{V_MST0}, v{V_T0}, s[{S_FLG}:{S_FLG+1}] sc1')
            A('s_mov_b64 exec, -1')
        waits = {0: 3, 2: 6, 4: 9, 6: 12, 8: 15, 10: 10, 11: 8, 12: 6, 13: 4, 14: 2, 15: 0}
        for f in range(16):
            ks, par = f >> 1, f & 1
            if f in waits: A(f's_waitcnt lgkmcnt({waits[f]})')
            A(self.smf(V_AQ + 4 * par, V_MF + 4 * ks, self.wq_base(f)))
            if f == 1:
                for k2 in range(4, 8): A(mfr(k2))
            if 2 <= f < 8:
                for ins in self.wq_read(f + 8): A(ins)
            if f == 9:
                for k in range(0, 8, 2): A(f'v_mov_b64 v[{V_AK+k}:{V_AK+k+1}], 0')
            if f == 10:
                for k in range(0, 8, 2): A(f'v_mov_b64 v[{V_AV+k}:{V_AV+k+1}], 0')
        self.stamp(4)
        qpost = self.post_qk(V_AQ, V_AQ + 4, 0)
        kfr = [f'ds_read_b128 v[{V_KF+(T*4+ks)*4}:{V_KF+(T*4+ks)*4+3}], v{V_KX0+ks} offset:{T*4096}' for T in range(2) for ks in range(4)]
        fill = {0: kfr[0:1], 1: kfr[1:2], 2: qpost[0:4], 3: qpost[4:6], 4: kfr[2:3], 5: kfr[3:4], 6: kfr[4:5], 7: kfr[5:6], 8: kfr[6:7], 9: kfr[7:8],
                11: ['s_waitcnt lgkmcnt(0)', 's_barrier'],
                12: [f'ds_read_b128 v[{V_QF+4*ks}:{V_QF+4*ks+3}], v{V_QKR} offset:{64*ks}' for ks in range(2)],
                13: [f'ds_read_b128 v[{V_QF+4*ks}:{V_QF+4*ks+3}], v{V_QKR} offset:{64*ks}' for ks in range(2, 4)]}
        for f in range(16):
            ks, par = f >> 1, f & 1
            A(self.smf(V_AK + 4 * par, V_MF + 4 * ks, wk_reg(0, par, ks)))
            for ins in fill.get(f, []): A(ins)
        self.stamp(5)
        ST = V_AQ
        smx = []
        for ks in range(4):
            for T in range(2):
                c_ = '0' if ks == 0 else f'v[{ST+4*T}:{ST+4*T+3}]'
                smx.append(f'v_mfma_f32_16x16x32_bf16 v[{ST+4*T}:{ST+4*T+3}], v[{V_KF+(T*4+ks)*4}:{V_KF+(T*4+ks)*4+3}], v[{V_QF+4*ks}:{V_QF+4*ks+3}], {c_}')
        vp = [self.smf(V_AV + 4 * (f & 1), V_MF + 4 * (f >> 1), wk_reg(1, f & 1, f >> 1)) for f in range(16)]
        kpost = self.post_qk(V_AK, V_AK + 4, 8 * QK_RS)
        A(vp[0]); A(vp[1]); A(vp[2])
        for ins in kpost: A(ins)
        A('s_waitcnt lgkmcnt(2)')
        for ins in smx[0:2]: A(ins)
        if not o.get('nopub'):
            A(f'global_store_dword v{V_KMS}, v{V_AK}, s[{S_KM}:{S_KM+1}] sc1')
            A(smx[2])
            A(f'global_store_dword v{V_KMS}, v{V_AK+1}, s[{S_KM}:{S_KM+1}] offset:256 sc1')
            for ins in smx[3:6]: A(ins)
        else:
            for ins in smx[2:6]: A(ins)
        A('s_waitcnt lgkmcnt(0)')
        A('s_barrier')
        for ins in smx[6:8]: A(ins)
        for ks in range(4):
            A(f'ds_read_b128 v[{V_KMF+4*ks}:{V_KMF+4*ks+3}], v{V_KMR} offset:{64*ks}')
        A(f'ds_read_b128 v[{V_VC}:{V_VC+3}], v{V_VXR}')
        A(f'ds_read_b128 v[{V_VC+4}:{V_VC+7}], v{V_VXR} offset:1024')
        A(vp[3])
        if not o.get('nopf'):
            Lnp = A.label('Lnopf')
            A(f's_cmp_eq_u32 s{S_STEP}, {self.nsteps-1}')
            A(f's_cbranch_scc1 {Lnp}')
            self.prefetch_k()
            A(f'{Lnp}:')
        for f in range(4, 8): A(vp[f])
        SM = V_AK
        A('s_waitcnt lgkmcnt(2)')
        for ks in range(4):
            c_ = '0' if ks == 0 else f'v[{SM}:{SM+3}]'
            A(f'v_mfma_f32_16x16x32_bf16 v[{SM}:{SM+3}], v[{V_KMF+4*ks}:{V_KMF+4*ks+3}], v[{V_QF+4*ks}:{V_QF+4*ks+3}], {c_}')
        self.stamp(6)
        mx, t1 = V_T0, V_T1
        A(vp[8])
        A(f'v_max3_f32 v{mx}, v{ST}, v{ST+1}, v{ST+2}')
        A(f'v_max3_f32 v{t1}, v{ST+3}, v{ST+4}, v{ST+5}')
        A(vp[9])
        A(f'v_max3_f32 v{mx}, v{mx}, v{ST+6}, v{ST+7}')
        A(vp[10])
        A(f'v_max_f32 v{mx}, v{mx}, v{t1}')
        A(vp[11])
        A('s_nop 1')
        A(f'v_max3_f32 v{t1}, v{SM}, v{SM+1}, v{SM+2}')
        A(f'v_max3_f32 v{mx}, v{mx}, v{t1}, v{SM+3}')
        A(f'v_mov_b32 v{t1}, v{mx}')
        A(vp[12])
        A('s_nop 0')
        A(f'v_permlane16_swap_b32 v{mx}, v{t1}')
        A(f'v_max_f32 v{mx}, v{mx}, v{t1}')
        A(f'v_mov_b32 v{t1}, v{mx}')
        A(vp[13])
        A('s_nop 0')
        A(f'v_permlane32_swap_b32 v{mx}, v{t1}')
        A(vp[14])
        A(f'v_max_f32 v{mx}, v{mx}, v{t1}')
        A(vp[15])
        A(f'v_mul_f32 v{mx}, s{S_C1}, v{mx}')
        def pkfma(x): return f'v_pk_fma_f32 v[{x}:{x+1}], v[{x}:{x+1}], s[{S_C1}:{S_C1+1}], v[{mx}:{mx+1}] op_sel_hi:[1,1,0] neg_lo:[0,0,1] neg_hi:[0,0,1]'
        for k in range(0, 8, 2): A(pkfma(ST + k))
        for k in range(0, 4, 2): A(pkfma(SM + k))
        for k in range(8): A(f'v_exp_f32 v{ST+k}, v{ST+k}')
        VP = V_AK + 4
        PT, PM, OA = V_QF, V_QF + 4, V_QF + 8
        for k in range(4): A(f'v_exp_f32 v{SM+k}, v{SM+k}')
        A(f'v_cvt_pk_bf16_f32 v{PT}, v{ST}, v{ST+1}')
        A(f'v_cvt_pk_bf16_f32 v{PT+1}, v{ST+2}, v{ST+3}')
        A(f'v_cvt_pk_bf16_f32 v{PT+2}, v{ST+4}, v{ST+5}')
        A(f'v_cvt_pk_bf16_f32 v{PT+3}, v{ST+6}, v{ST+7}')
        A(f'v_cvt_pk_bf16_f32 v{VP}, v{V_AV}, v{V_AV+1}')
        A(f'v_cvt_pk_bf16_f32 v{VP+1}, v{V_AV+2}, v{V_AV+3}')
        A('s_waitcnt lgkmcnt(0)')
        for T in range(2):
            A(f'v_mfma_f32_16x16x32_bf16 v[{OA+4*T}:{OA+4*T+3}], v[{V_VC+4*T}:{V_VC+4*T+3}], v[{PT}:{PT+3}], 0')
        A(f'v_cvt_pk_bf16_f32 v{PM}, v{SM}, v{SM+1}')
        A(f'v_cvt_pk_bf16_f32 v{PM+1}, v{SM+2}, v{SM+3}')
        A(f'v_cvt_pk_bf16_f32 v{VP+2}, v{V_AV+4}, v{V_AV+5}')
        A(f'v_cvt_pk_bf16_f32 v{VP+3}, v{V_AV+6}, v{V_AV+7}')
        A(f'v_pk_add_f32 v[{ST}:{ST+1}], v[{ST}:{ST+1}], v[{ST+2}:{ST+3}]')
        for T in range(2):
            A(f'v_mfma_f32_16x16x16_bf16 v[{OA+4*T}:{OA+4*T+3}], v[{VP+2*T}:{VP+2*T+1}], v[{PM}:{PM+1}], v[{OA+4*T}:{OA+4*T+3}]')
        self.stamp(7)
        A(f's_cmp_eq_u32 s{S_STEP}, {self.nsteps-1}')
        A(f's_cbranch_scc1 {Lend}')
        ls = V_T0
        A(f'v_pk_add_f32 v[{SM}:{SM+1}], v[{SM}:{SM+1}], v[{SM+2}:{SM+3}]')
        A(f'v_pk_add_f32 v[{ST+4}:{ST+5}], v[{ST+4}:{ST+5}], v[{ST+6}:{ST+7}]')
        A(f'v_add_f32 v{SM}, v{SM}, v{SM+1}')
        A(f'v_pk_add_f32 v[{ST}:{ST+1}], v[{ST}:{ST+1}], v[{ST+4}:{ST+5}]')
        A(f'v_add_f32 v{ST}, v{ST}, v{ST+1}')
        A(f'v_fma_f32 v{ls}, v{SM}, 0.5, v{ST}')
        A(f'v_mov_b32 v{t1}, v{ls}')
        A('s_nop 1')
        A(f'v_permlane16_swap_b32 v{ls}, v{t1}')
        A(f'v_add_f32 v{ls}, v{ls}, v{t1}')
        A(f'v_mov_b32 v{t1}, v{ls}')
        A('s_nop 1')
        A(f'v_permlane32_swap_b32 v{ls}, v{t1}')
        A(f'v_add_f32 v{ls}, v{ls}, v{t1}')
        A(f'v_rcp_f32 v{ls}, v{ls}')
        A('s_mov_b32 exec_lo, 0x00ff00ff')
        for k in range(0, 8, 2):
            A(f'v_pk_mul_f32 v[{OA+k}:{OA+k+1}], v[{OA+k}:{OA+k+1}], v[{ls}:{ls+1}] op_sel_hi:[1,0]')
        A('s_mov_b32 exec_hi, 0x00ff00ff')
        for k in range(4):
            A(f'v_cvt_pk_bf16_f32 v{OA+k}, v{OA+2*k}, v{OA+2*k+1}')
        A(f'ds_write_b128 v{V_OXW}, v[{OA}:{OA+3}]')
        A('s_mov_b64 exec, -1')
        if not o.get('nopub'):
            A(f'global_store_dwordx2 v{V_VMS}, v[{VP}:{VP+1}], s[{S_VM}:{S_VM+1}] sc1')
            A(f'global_store_dwordx2 v{V_VMS}, v[{VP+2}:{VP+3}], s[{S_VM}:{S_VM+1}] offset:512 sc1')
        A('s_waitcnt lgkmcnt(0)')
        A('s_barrier')
        self.stamp(8)
        OF = V_VC
        A(f'ds_read_b128 v[{OF}:{OF+3}], v{V_OXR}')
        A(f'ds_read_b128 v[{OF+4}:{OF+7}], v{V_OXR} offset:128')
        for k in range(0, 32, 2):
            A(f'v_mov_b64 v[{V_MF+k}:{V_MF+k+1}], 0')
        A('s_waitcnt lgkmcnt(0)')
        if not o.get('nopf'):
            self.prefetch_v()
        def post4(g4):
            a0 = V_MF + 16 * g4
            ta, tb, tc, td = a0, a0 + 4, a0 + 8, a0 + 12
            I = []
            for t_ in (ta, tb, tc, td):
                I.append(f'v_pk_add_f32 v[{t_}:{t_+1}], v[{t_}:{t_+1}], v[{t_+2}:{t_+3}]')
            I.append(f'v_cvt_pk_bf16_f32 v{ta}, v{ta}, v{ta+1}')
            I.append(f'v_cvt_pk_bf16_f32 v{ta+2}, v{tc}, v{tc+1}')
            I.append(f'v_cvt_pk_bf16_f32 v{ta+1}, v{tb}, v{tb+1}')
            I.append(f'v_cvt_pk_bf16_f32 v{ta+3}, v{td}, v{td+1}')
            I.append(f'v_permlane32_swap_b32 v{ta}, v{ta+2}')
            I.append('s_nop 0')
            I.append(f'v_permlane32_swap_b32 v{ta+1}, v{ta+3}')
            I.append('s_nop 1')
            I.append(f'v_permlane16_swap_b32 v{ta}, v{ta+1}')
            I.append(f'v_permlane16_swap_b32 v{ta+2}, v{ta+3}')
            I.append(f'v_bfi_b32 v{ta}, 1, s{S_TAG}, v{ta}')
            I.append(f'global_store_dwordx4 v{V_P1S}, v[{ta}:{ta+3}], s[{S_P1S+2*g4}:{S_P1S+2*g4+1}]{st}')
            return I
        mf = [self.smf(V_MF + 4 * tt, OF + 4 * ks, wo_reg(tt, ks)) for tt in range(8) for ks in range(2)]
        p0 = post4(0); p1 = post4(1)
        for ins in mf[0:10]: A(ins)
        seq = [p0[0:2], p0[2:4], p0[4:6], p0[6:8], p0[8:11], p0[11:14]]
        for k_, ins in enumerate(mf[10:16]):
            A(ins)
            for x in seq[k_]: A(x)
        for x in p0[14:]: A(x)
        for x in p1: A(x)
        self.stamp(9)
        A(f's_add_u32 s{S_KM}, s{S_KM}, 65536'); A(f's_addc_u32 s{S_KM+1}, s{S_KM+1}, 0')
        A(f's_add_u32 s{S_VM}, s{S_VM}, 131072'); A(f's_addc_u32 s{S_VM+1}, s{S_VM+1}, 0')
        self.stamp(11)
        A(f's_branch {Lloop}')
        A(f'{Lend}:')
        if not o.get('nopub'):
            A(f'global_store_dwordx2 v{V_VMS}, v[{VP}:{VP+1}], s[{S_VM}:{S_VM+1}] sc1')
            A(f'global_store_dwordx2 v{V_VMS}, v[{VP+2}:{VP+3}], s[{S_VM}:{S_VM+1}] offset:512 sc1')
        A('s_waitcnt vmcnt(0)')
        A(f's_add_u32 s13, s{S_STEP}, 1')
        A(f'v_mov_b32 v{V_T0}, s13')
        A(f's_mov_b64 exec, 1')
        A(f'global_store_dword v{V_MST0}, v{V_T0}, s[{S_FLG}:{S_FLG+1}] sc1')
        A('s_mov_b64 exec, -1')

    def gstamp(self, k):
        if not self.o.get('gts'): return
        A = self.A
        A('s_memtime s[88:89]')
        A('s_memrealtime s[90:91]')
        A('s_waitcnt lgkmcnt(0)')
        A(f's_mul_i32 s92, s{S_J}, 256')
        A(f's_lshl_b32 s93, s{S_W}, 6')
        A('s_add_u32 s92, s92, s93')
        A(f's_add_u32 s92, s92, {WS_TS + 0x200000 + 16*k}')
        A(f's_add_u32 s92, s{S_WS}, s92'); A(f's_addc_u32 s93, s{S_WS+1}, 0')
        A('v_mov_b32 v22, s88'); A('v_mov_b32 v23, s90'); A('v_mov_b32 v24, 0')
        A('s_mov_b64 exec, 1')
        A('global_store_dwordx2 v24, v[22:23], s[92:93]')
        A('s_mov_b64 exec, -1')
        A('s_nop 4')

    def gen(self, Lexit):
        A = self.A
        self.gstamp(0)
        self.startup()
        self.gstamp(1)
        Lslow = A.label('Lchain_slow')
        A(f's_cmp_eq_u32 s{S_FAST}, 0')
        A(f's_cbranch_scc1 {Lslow}')
        self.step_loop(True)
        self.gstamp(2)
        A(f's_branch {Lexit}')
        A(f'{Lslow}:')
        self.step_loop(False)
        A(f's_branch {Lexit}')
```

```python
from asmlib import *
from layout import *

S_WS = 4
S_DBG = 6
S_G = 8
S_J = 9
S_W = 10
S_FAST = 11
S_SPIN = 12
S_T0 = 13
SPIN_BUDGET = 1 << 20

def spin_check(A, Lretry, Ldone):
    A(f's_cmp_eq_u32 s{S_SPIN}, 0')
    A(f's_cbranch_scc1 {Ldone}')
    A(f's_sub_u32 s{S_SPIN}, s{S_SPIN}, 1')
    A(f's_branch {Lretry}')

def role_assign(A, Lexit, lds_scratch):
    A('s_cmp_ge_u32 s2, 256')
    A(f's_cbranch_scc1 {Lexit}')
    A(f's_load_dwordx2 s[{S_WS}:{S_WS+1}], s[0:1], 112')
    A(f's_load_dwordx2 s[{S_DBG}:{S_DBG+1}], s[0:1], 104')
    A(f's_mov_b32 s{S_SPIN}, {SPIN_BUDGET}')
    A('s_getreg_b32 s13, hwreg(HW_REG_XCC_ID)')
    A('s_and_b32 s13, s13, 15')
    A('v_lshrrev_b32 v1, 6, v0')
    A('s_nop 0')
    A(f'v_readfirstlane_b32 s{S_W}, v1')
    A('s_waitcnt lgkmcnt(0)')
    Lw0 = A.label('Lrole_w0done')
    A(f's_cmp_lg_u32 s{S_W}, 0')
    A(f's_cbranch_scc1 {Lw0}')
    A('s_lshl_b32 s14, s13, 2')
    A('v_mov_b32 v1, s14')
    A('v_mov_b32 v2, 1')
    A('v_cmp_eq_u32 vcc, 0, v0')
    A('s_and_saveexec_b64 s[16:17], vcc')
    A(f'global_atomic_add v3, v1, v2, s[{S_DBG}:{S_DBG+1}] sc0')
    A('s_waitcnt vmcnt(0)')
    A('s_mov_b64 exec, s[16:17]')
    A('s_nop 4')
    A('v_readfirstlane_b32 s15, v3')
    A('v_and_b32 v4, 15, v0')
    A('v_lshlrev_b32 v5, 2, v4')
    Lp = A.label('Lrole_poll'); Ld = A.label('Lrole_polld')
    A(f'{Lp}:')
    A(f'global_load_dword v6, v5, s[{S_DBG}:{S_DBG+1}] sc1')
    A('s_waitcnt vmcnt(0)')
    A('v_mov_b32 v7, v6')
    for mod in ['quad_perm:[1,0,3,2]', 'quad_perm:[2,3,0,1]', 'row_half_mirror', 'row_mirror']:
        A('s_nop 1')
        A(f'v_add_u32_dpp v7, v7, v7 {mod} {DPP}')
    A('s_nop 1')
    A('v_readfirstlane_b32 s14, v7')
    A('s_cmp_ge_u32 s14, 256')
    A(f's_cbranch_scc1 {Ld}')
    spin_check(A, Lp, Ld)
    A(f'{Ld}:')
    A('v_cmp_gt_u32 vcc, s13, v4')
    A('s_nop 1')
    A('v_cndmask_b32 v7, 0, v6, vcc')
    for mod in ['quad_perm:[1,0,3,2]', 'quad_perm:[2,3,0,1]', 'row_half_mirror', 'row_mirror']:
        A('s_nop 1')
        A(f'v_add_u32_dpp v7, v7, v7 {mod} {DPP}')
    A('s_nop 1')
    A('v_readfirstlane_b32 s14, v7')
    A('s_add_u32 s14, s14, s15')
    A('v_cmp_lt_u32 vcc, 0, v6')
    A('s_nop 1')
    A('s_ff1_i32_b32 s15, vcc_lo')
    A('s_nop 3')
    A('v_readlane_b32 s16, v6, s15')
    A('s_nop 3')
    A('s_cmp_ge_u32 s16, 32')
    A('s_cselect_b32 s16, 1, 0')
    A('s_lshl_b32 s16, s16, 16')
    A('s_or_b32 s14, s14, s16')
    A('v_mov_b32 v1, s14')
    A(f'v_mov_b32 v2, {lds_scratch}')
    A('ds_write_b32 v2, v1')
    A('s_waitcnt lgkmcnt(0)')
    A(f'{Lw0}:')
    A('s_barrier')
    A(f'v_mov_b32 v2, {lds_scratch}')
    A('ds_read_b32 v1, v2')
    A('s_waitcnt lgkmcnt(0)')
    A('v_readfirstlane_b32 s14, v1')
    A('s_nop 3')
    A(f's_lshr_b32 s{S_FAST}, s14, 16')
    A('s_and_b32 s14, s14, 0xffff')
    A(f's_lshr_b32 s{S_G}, s14, 5')
    A(f's_and_b32 s{S_J}, s14, 31')
    A('s_barrier')
```

```python
from asmlib import *
from layout import *
from k_common import *

GX = 0
GW = 49152
GE = 98304
G_XB, G_WB = 16, 18
G_NK, G_KK, G_TYPE, G_TT, G_NT = 20, 21, 22, 23, 24
G_LDA, G_LDB = 25, 26
G_M0X, G_M0W = 27, 28
G_OUT = 30
G_FLG = 32
G_P = 34
G_T = 36
G_IN = 40
VX = 8
VWD = 12
VXR = 16
VWR = 20
VL, VC_, VHH = 22, 23, 24
VT = 25
FR = 32
EP = 64
ACC = 128
E_TYPE, E_TT, E_NT, E_PEND, E_FLG = 90, 91, 92, 93, 94

PROF = False
G_TSP = 64
def gst(A, k, flush=False):
    if not PROF: return
    A(f's_memtime s[{66+2*k}:{66+2*k+1}]')
    if flush:
        A('s_waitcnt lgkmcnt(0)')
        A('s_mov_b64 exec, 1')
        A(f'v_mov_b32 v{VT+1}, 0')
        for kk in range(k + 1):
            A(f'v_mov_b32 v{VT}, s{66+2*kk}')
            A(f'global_store_dword v{VT+1}, v{VT}, s[{G_TSP}:{G_TSP+1}] offset:{4*kk}')
            A('s_nop 1')
        A(f'v_mov_b32 v{VT}, s{G_TYPE}')
        A(f'global_store_dword v{VT+1}, v{VT}, s[{G_TSP}:{G_TSP+1}] offset:60')
        A('s_mov_b64 exec, -1')
        A(f's_add_u32 s{G_TSP}, s{G_TSP}, 64'); A(f's_addc_u32 s{G_TSP+1}, s{G_TSP+1}, 0')

def load_inputs(A):
    for i, off in enumerate([16, 24, 32, 64, 72, 80, 88, 0]):
        A(f's_load_dwordx2 s[{G_IN+2*i}:{G_IN+2*i+1}], s[0:1], {off}')

def lane_consts(A):
    A(f'v_and_b32 v{VL}, 63, v0')
    A(f'v_and_b32 v{VC_}, 31, v0')
    A(f'v_bfe_u32 v{VHH}, v0, 5, 1')
    t, u = VT, VT + 1
    W = f's{S_W}'
    A(f'v_bfe_u32 v{t}, v{VC_}, 1, 3')
    A(f'v_xor_b32 v{t}, v{t}, v{VHH}')
    A(f'v_lshlrev_b32 v{t}, 4, v{t}')
    A(f'v_lshl_add_u32 v{t}, v{VC_}, 7, v{t}')
    A(f's_lshr_b32 s13, {W}, 1'); A('s_lshl_b32 s13, s13, 13')
    A(f'v_add_u32 v{t}, s13, v{t}')
    for st in range(4):
        A(f'v_xor_b32 v{VXR+st}, {st << 5}, v{t}')
    A(f'v_bfe_u32 v{t}, v{VL}, 2, 2')
    A(f'v_lshl_add_u32 v{u}, v{VHH}, 3, v{t}')
    A(f'v_lshlrev_b32 v{u}, 8, v{u}')
    A(f's_and_b32 s13, {W}, 1'); A('s_lshl_b32 s13, s13, 1')
    A(f'v_xor_b32 v{t}, s13, v{t}')
    A(f'v_lshl_add_u32 v{u}, v{t}, 6, v{u}')
    A(f'v_bfe_u32 v{t}, v{VL}, 4, 1')
    A(f'v_lshl_add_u32 v{u}, v{t}, 5, v{u}')
    A(f'v_and_b32 v{t}, 3, v{VL}')
    A(f'v_lshl_add_u32 v{u}, v{t}, 3, v{u}')
    A(f'v_add_u32 v{u}, {GW}, v{u}')
    A(f'v_mov_b32 v{VWR}, v{u}')
    A(f'v_xor_b32 v{VWR+1}, 64, v{u}')
    A(f's_lshl_b32 s{G_M0X}, {W}, 12')
    A(f's_add_u32 s{G_M0W}, s{G_M0X}, {GW}')

def item_setup(A):
    W = f's{S_W}'
    ws = S_WS
    L = {k: A.label(f'Lsetup{k}') for k in ['v', 'q', 'h', 'b', 'done']}
    A(f's_mov_b32 s{G_LDA}, 1024'); A(f's_mov_b32 s{G_LDB}, 8192'); A(f's_mov_b32 s{G_NK}, 8')
    A(f's_lshl_b32 s{G_T}, s{G_TT}, 17')
    A(f's_add_u32 s{G_XB}, s{ws}, s{G_T}'); A(f's_addc_u32 s{G_XB+1}, s{ws+1}, 0')
    A(f's_lshl_b32 s{G_T+1}, s{G_NT}, 8')
    A(f's_cmp_eq_u32 s{G_TYPE}, 1'); A(f's_cbranch_scc1 {L["v"]}')
    A(f's_cmp_eq_u32 s{G_TYPE}, 2'); A(f's_cbranch_scc1 {L["q"]}')
    A(f's_cmp_eq_u32 s{G_TYPE}, 3'); A(f's_cbranch_scc1 {L["h"]}')
    A(f's_cmp_eq_u32 s{G_TYPE}, 4'); A(f's_cbranch_scc1 {L["b"]}')
    A(f's_mov_b64 s[{G_WB}:{G_WB+1}], s[{G_IN+2}:{G_IN+3}]'); A(f's_branch {L["done"]}')
    A(f'{L["v"]}:'); A(f's_mov_b64 s[{G_WB}:{G_WB+1}], s[{G_IN+4}:{G_IN+5}]'); A(f's_branch {L["done"]}')
    A(f'{L["q"]}:'); A(f's_mov_b64 s[{G_WB}:{G_WB+1}], s[{G_IN}:{G_IN+1}]'); A(f's_branch {L["done"]}')
    A(f'{L["h"]}:')
    A(f's_mov_b64 s[{G_WB}:{G_WB+1}], s[{G_IN+6}:{G_IN+7}]')
    A(f's_mov_b32 s{G_LDB}, 3584')
    A(f's_add_u32 s{G_XB}, s{G_XB}, {WS_Y}'); A(f's_addc_u32 s{G_XB+1}, s{G_XB+1}, 0')
    A(f's_branch {L["done"]}')
    A(f'{L["b"]}:')
    A(f's_mov_b64 s[{G_WB}:{G_WB+1}], s[{G_IN+10}:{G_IN+11}]')
    A(f's_mov_b32 s{G_LDB}, 1024'); A(f's_mov_b32 s{G_LDA}, 3584'); A(f's_mov_b32 s{G_NK}, 28')
    A(f's_mul_i32 s{G_T}, s{G_TT}, {128*3584}')
    A(f's_add_u32 s{G_T}, s{G_T}, {WS_HH}')
    A(f's_add_u32 s{G_XB}, s{ws}, s{G_T}'); A(f's_addc_u32 s{G_XB+1}, s{ws+1}, 0')
    A(f'{L["done"]}:')
    A(f's_add_u32 s{G_WB}, s{G_WB}, s{G_T+1}'); A(f's_addc_u32 s{G_WB+1}, s{G_WB+1}, 0')
    t, u, x = VT, VT + 1, VT + 2
    for uu in range(4):
        A(f's_lshl_b32 s13, {W}, 5'); A(f's_add_u32 s13, s13, {8*uu}')
        A(f'v_lshrrev_b32 v{t}, 3, v{VL}')
        A(f'v_add_u32 v{t}, s13, v{t}')
        A(f'v_bfe_u32 v{u}, v{t}, 1, 3')
        A(f'v_xor_b32 v{u}, v{u}, v{VL}')
        A(f'v_and_b32 v{u}, 7, v{u}')
        A(f'v_mul_lo_u32 v{t}, v{t}, s{G_LDA}')
        A(f'v_lshl_add_u32 v{t}, v{u}, 4, v{t}')
        A(f'v_subrev_u32 v{VX+uu}, {1024*uu}, v{t}')
    A(f'v_lshrrev_b32 v{x}, 4, v{VL}')
    A(f'v_lshlrev_b32 v{u}, 2, v{x}')
    A(f'v_xor_b32 v{u}, v{u}, v{VL}')
    A(f'v_and_b32 v{u}, 15, v{u}')
    A(f'v_lshlrev_b32 v{u}, 4, v{u}')
    Lp = A.label('Lperm'); Lq = A.label('Lpermd')
    A(f's_cmp_eq_u32 s{G_TYPE}, 4'); A(f's_cbranch_scc1 {Lp}')
    for uu in range(4):
        A(f's_lshl_b32 s13, {W}, 4'); A(f's_add_u32 s13, s13, {4*uu}')
        A(f'v_add_u32 v{t}, s13, v{x}')
        A(f'v_mul_lo_u32 v{t}, v{t}, s{G_LDB}')
        A(f'v_add_u32 v{t}, v{t}, v{u}')
        A(f'v_subrev_u32 v{VWD+uu}, {1024*uu}, v{t}')
    A(f's_branch {Lq}')
    A(f'{Lp}:')
    A(f'v_and_b32 v{t}, 1, v{x}'); A(f'v_lshlrev_b32 v{t}, 4, v{t}')
    A(f'v_lshrrev_b32 v{x}, 1, v{x}'); A(f'v_add_u32 v{x}, v{x}, v{t}')
    for uu in range(4):
        A(f's_lshl_b32 s13, {W}, 4'); A(f's_add_u32 s13, s13, {4*uu}')
        A('s_and_b32 s14, s13, 31'); A('s_lshr_b32 s14, s14, 1')
        A('s_and_b32 s13, s13, 32'); A('s_add_u32 s13, s13, s14')
        A(f'v_add_u32 v{t}, s13, v{x}')
        A(f'v_mul_lo_u32 v{t}, v{t}, s{G_LDB}')
        A(f'v_add_u32 v{t}, v{t}, v{u}')
        A(f'v_subrev_u32 v{VWD+uu}, {1024*uu}, v{t}')
    A(f'{Lq}:')

def stage_pieces(b, sc1x):
    fl = ' sc1' if sc1x else ''
    P = []
    P.append([f's_add_u32 m0, s{G_M0X}, {b*16384}', 's_nop 0'] +
             [f'global_load_lds_dwordx4 v{VX+uu}, s[{G_XB}:{G_XB+1}] offset:{1024*uu}{fl}' for uu in range(2)])
    P.append([f'global_load_lds_dwordx4 v{VX+uu}, s[{G_XB}:{G_XB+1}] offset:{1024*uu}{fl}' for uu in range(2, 4)] +
             [f's_add_u32 s{G_XB}, s{G_XB}, 128', f's_addc_u32 s{G_XB+1}, s{G_XB+1}, 0'])
    P.append([f's_add_u32 m0, s{G_M0W}, {b*16384}', 's_nop 0'] +
             [f'global_load_lds_dwordx4 v{VWD+uu}, s[{G_WB}:{G_WB+1}] offset:{1024*uu}' for uu in range(2)])
    P.append([f'global_load_lds_dwordx4 v{VWD+uu}, s[{G_WB}:{G_WB+1}] offset:{1024*uu}' for uu in range(2, 4)] +
             [f's_lshl_b32 s13, s{G_LDB}, 6', f's_add_u32 s{G_WB}, s{G_WB}, s13', f's_addc_u32 s{G_WB+1}, s{G_WB+1}, 0'])
    return P

def issue_stage(A, b, sc1x):
    for p in stage_pieces(b, sc1x):
        for ins in p: A(ins)

def frag_reads(b, st, fs):
    base = FR + 16 * fs
    I = []
    for tm in range(2):
        I.append(f'ds_read_b128 v[{base+4*tm}:{base+4*tm+3}], v{VXR+st} offset:{b*16384 + tm*4096}')
    for tn in range(2):
        for qh in range(2):
            I.append(f'ds_read_b64_tr_b16 v[{base+8+4*tn+2*qh}:{base+8+4*tn+2*qh+1}], v{VWR+tn} offset:{b*16384 + (16*st+4*qh)*256}')
    return I

def mfmas(fs, swapped):
    base = FR + 16 * fs
    I = []
    for tm in range(2):
        for tn in range(2):
            acc = (tm * 2 + tn) * 16
            x = f'v[{base+4*tm}:{base+4*tm+3}]'; w = f'v[{base+8+4*tn}:{base+8+4*tn+3}]'
            acc += ACC
            if swapped: I.append(f'v_mfma_f32_32x32x16_bf16 v[{acc}:{acc+15}], {w}, {x}, v[{acc}:{acc+15}]')
            else: I.append(f'v_mfma_f32_32x32x16_bf16 v[{acc}:{acc+15}], {x}, {w}, v[{acc}:{acc+15}]')
    return I

def send_pending(A):
    L = A.label('Lsp')
    A(f's_cmp_eq_u32 s{E_PEND}, 0')
    A(f's_cbranch_scc1 {L}')
    A(f's_mov_b32 s{E_PEND}, 0')
    A(f's_cmp_lg_u32 s{S_W}, 0')
    A(f's_cbranch_scc1 {L}')
    A(f'v_mov_b32 v{VT}, s{E_FLG}')
    A(f'v_mov_b32 v{VT+1}, 1')
    A('s_mov_b64 exec, 1')
    A(f'global_atomic_add v{VT}, v{VT+1}, s[{S_WS}:{S_WS+1}]')
    A('s_mov_b64 exec, -1')
    A(f'{L}:')

def kloop(A, swapped, sc1x):
    for i in range(0, 64, 2): A(f'v_mov_b64 v[{ACC+i}:{ACC+i+1}], 0')
    L1 = A.label('Lkp1'); L2 = A.label('Lkp2')
    A(f's_cmp_eq_u32 s{E_PEND}, 0')
    A(f's_cbranch_scc1 {L1}')
    A('s_waitcnt vmcnt(16)')
    A(f's_branch {L2}')
    A(f'{L1}:')
    A('s_waitcnt vmcnt(8)')
    A(f'{L2}:')
    A('s_barrier')
    gst(A, 2)
    for ins in frag_reads(0, 0, 0): A(ins)
    A(f's_mov_b32 s{G_KK}, 0')
    Ltop = A.label('Lk_top'); Lend = A.label('Lk_end')
    A(f'{Ltop}:')
    for b in range(3):
        Lnd = A.label('Lk_nodma'); Ljoin = A.label('Lk_join')
        A(f's_add_u32 s13, s{G_KK}, 2')
        A(f's_cmp_ge_u32 s13, s{G_NK}')
        A(f's_cbranch_scc1 {Lnd}')
        P = stage_pieces((b + 2) % 3, sc1x)
        for dma in (True, False):
            if not dma: A(f'{Lnd}:')
            for st in range(3):
                for ins in frag_reads(b, st + 1, (st + 1) & 1): A(ins)
                A('s_waitcnt lgkmcnt(6)')
                mm = mfmas(st & 1, swapped)
                A(mm[0]); A(mm[1])
                if dma:
                    for ins in P[st]: A(ins)
                A(mm[2]); A(mm[3])
            if dma:
                for ins in P[3]: A(ins)
                A(f's_branch {Ljoin}')
        A(f'{Ljoin}:')
        A('s_waitcnt lgkmcnt(0)')
        A(f's_add_u32 s{G_KK}, s{G_KK}, 1')
        Llast = A.label('Lk_last'); Lw0 = A.label('Lk_w0'); Lw1 = A.label('Lk_w1'); Lw2 = A.label('Lk_w2')
        A(f's_cmp_ge_u32 s{G_KK}, s{G_NK}')
        A(f's_cbranch_scc1 {Llast}')
        A(f's_add_u32 s13, s{G_KK}, 1')
        A(f's_cmp_lt_u32 s13, s{G_NK}')
        A(f's_cbranch_scc1 {Lw0}')
        A('s_waitcnt vmcnt(0)')
        A(f's_branch {Lw1}')
        A(f'{Lw0}:')
        if b == 0:
            A(f's_cmp_eq_u32 s{G_KK}, 1')
            A(f's_cselect_b32 s13, s{E_PEND}, 0')
            A(f's_cmp_eq_u32 s13, 0')
            A(f's_cbranch_scc1 {Lw2}')
            A('s_waitcnt vmcnt(16)')
            A(f's_branch {Lw1}')
            A(f'{Lw2}:')
        A('s_waitcnt vmcnt(8)')
        A(f'{Lw1}:')
        A('s_barrier')
        if b == 1:
            send_pending(A)
        for ins in frag_reads((b + 1) % 3, 0, 0): A(ins)
        for ins in mfmas(1, swapped): A(ins)
        if b == 2: A(f's_branch {Ltop}')
        else:
            Lnext = A.label('Lk_next')
            A(f's_branch {Lnext}')
        A(f'{Llast}:')
        for ins in mfmas(1, swapped): A(ins)
        A(f's_branch {Lend}')
        if b != 2: A(f'{Lnext}:')
    A(f'{Lend}:')
    gst(A, 3)

def copy_out(A, rowbytes_log2, row_stride_sgpr_or_imm, swz):
    pass

def signal(A, flag_sgpr_off):
    gst(A, 4)
    A('s_waitcnt vmcnt(0)')
    A('s_barrier')
    L = A.label('Lsig')
    A(f's_cmp_lg_u32 s{S_W}, 0')
    A(f's_cbranch_scc1 {L}')
    A(f's_add_u32 s{flag_sgpr_off}, s{flag_sgpr_off}, {WS_SY}')
    A(f'v_mov_b32 v{VT}, s{flag_sgpr_off}')
    A(f'v_mov_b32 v{VT+1}, 1')
    A('s_mov_b64 exec, 1')
    A(f'global_atomic_add v{VT}, v{VT+1}, s[{S_WS}:{S_WS+1}]')
    A('s_mov_b64 exec, -1')
    A(f'{L}:')

HOOK = {'tile': None, 'mid': None}
def hook_tile(A, i):
    if HOOK['tile']: HOOK['tile'](A, i)
def hook_mid(A):
    if HOOK['mid']: HOOK['mid'](A)

def readacc(A, dst, acc, n):
    for i in range(0, n, 2): A(f'v_mov_b64 v[{dst+i}:{dst+i+1}], v[{ACC+acc+i}:{ACC+acc+i+1}]')

def rows_out(A, row_stride):
    W = f's{S_W}'
    t, u = VT, VT + 1
    A(f'v_lshlrev_b32 v{t}, 4, v{VL}')
    A(f's_lshl_b32 s13, {W}, 13'); A(f's_add_u32 s13, s13, {GE}')
    A(f'v_add_u32 v{t}, s13, v{t}')
    for uu in range(8):
        A(f'ds_read_b128 v[{EP+4*uu}:{EP+4*uu+3}], v{t} offset:{1024*uu}')
    x, y = VT + 2, VT + 3
    A(f'v_lshrrev_b32 v{x}, 4, v{VL}')
    A(f's_lshl_b32 s13, {W}, 5')
    A(f'v_add_u32 v{x}, s13, v{x}')
    for uu in range(8):
        A(f'v_add_u32 v{y}, {4*uu}, v{x}')
        A(f'v_xor_b32 v{u}, v{y}, v{VL}')
        A(f'v_and_b32 v{u}, 15, v{u}')
        A(f'v_mul_u32_u24 v{y}, {row_stride}, v{y}')
        A(f'v_lshl_add_u32 v{EP+32+uu}, v{u}, 4, v{y}')
    hook_mid(A)
    for uu in range(8):
        A(f's_waitcnt lgkmcnt({7-uu})')
        A(f'global_store_dwordx4 v{EP+32+uu}, v[{EP+4*uu}:{EP+4*uu+3}], s[{G_OUT}:{G_OUT+1}] sc1')

def epi_addr_rows(A, dst):
    W = f's{S_W}'
    A(f's_lshr_b32 s13, {W}, 1'); A('s_lshl_b32 s13, s13, 14'); A(f's_add_u32 s13, s13, {GE}')
    A(f'v_lshlrev_b32 v{dst}, 8, v{VC_}')
    A(f'v_add_u32 v{dst}, s13, v{dst}')

def epi_kq(A, gelu):
    W = f's{S_W}'
    ad, ch, c15 = VT + 4, VT + 5, VT + 6
    epi_addr_rows(A, ad)
    A(f'v_and_b32 v{c15}, 15, v{VC_}')
    A(f's_and_b32 s14, {W}, 1'); A('s_lshl_b32 s14, s14, 3')
    A(f'v_add_u32 v{ch}, s14, v{VHH}')
    if gelu:
        A(f's_lshl_b32 s13, s{E_NT}, 8'); A(f's_and_b32 s14, {W}, 1'); A('s_lshl_b32 s14, s14, 7'); A('s_add_u32 s13, s13, s14')
        A(f's_add_u32 s{G_P}, s{G_IN+8}, s13'); A(f's_addc_u32 s{G_P+1}, s{G_IN+9}, 0')
        A(f'v_lshlrev_b32 v{VT}, 3, v{VHH}')
        for tn in range(2):
            for q in range(4):
                A(f'global_load_dwordx2 v[{EP+40+(tn*4+q)*2}:{EP+40+(tn*4+q)*2+1}], v{VT}, s[{G_P}:{G_P+1}] offset:{tn*64+q*16}')
        A('s_mov_b32 s36, 0xc0135761')
        A('s_mov_b32 s37, 0xbdd2d3e8')
        A('s_waitcnt vmcnt(0)')
    for tm in range(2):
        for tn in range(2):
            acc = (tm * 2 + tn) * 16
            readacc(A, EP, acc, 16)
            if gelu:
                for q in range(4):
                    bb = EP + 40 + (tn * 4 + q) * 2
                    for x in range(4):
                        r_ = EP + 4 * q + x
                        src = bb + (x >> 1)
                        A(f'v_cvt_pk_bf16_f32 v{r_}, v{r_}, v{r_}')
                        A(f'v_and_b32 v{r_}, 0xffff0000, v{r_}')
                        if x & 1: A(f'v_and_b32 v{EP+20}, 0xffff0000, v{src}')
                        else: A(f'v_lshlrev_b32 v{EP+20}, 16, v{src}')
                        A(f'v_add_f32 v{r_}, v{r_}, v{EP+20}')
                        A(f'v_cvt_pk_bf16_f32 v{r_}, v{r_}, v{r_}')
                        A(f'v_and_b32 v{r_}, 0xffff0000, v{r_}')
                for k in range(16):
                    r_ = EP + k; z = EP + 20 + (k & 3)
                    A(f'v_mul_f32 v{z}, v{r_}, v{r_}')
                    A(f'v_mov_b32 v{EP+24}, s36')
                    A(f'v_fma_f32 v{z}, v{z}, s37, v{EP+24}')
                    A(f'v_mul_f32 v{z}, v{z}, v{r_}')
                    A(f'v_exp_f32 v{z}, v{z}')
                    A('s_nop 0')
                    A(f'v_add_f32 v{z}, 1.0, v{z}')
                    A(f'v_rcp_f32 v{z}, v{z}')
                    A('s_nop 0')
                    A(f'v_mul_f32 v{r_}, v{r_}, v{z}')
            for p in range(2):
                for x in range(4):
                    A(f'v_cvt_pk_bf16_f32 v{EP+16+x}, v{EP+4*p+x}, v{EP+4*(p+2)+x}')
                A(f'v_add_u32 v{VT}, {4*tn+2*p}, v{ch}')
                A(f'v_xor_b32 v{VT}, v{VT}, v{c15}')
                A(f'v_lshl_add_u32 v{VT}, v{VT}, 4, v{ad}')
                A(f'ds_write_b128 v{VT}, v[{EP+16}:{EP+19}] offset:{tm*8192}')
            hook_tile(A, tm * 2 + tn)
    A('s_waitcnt lgkmcnt(0)')
    A('s_barrier')

def epi_v(A):
    W = f's{S_W}'
    ad = VT + 4
    A(f's_lshr_b32 s13, {W}, 1'); A('s_lshl_b32 s13, s13, 14')
    A(f's_and_b32 s14, {W}, 1'); A('s_lshl_b32 s14, s14, 12'); A('s_add_u32 s13, s13, s14'); A(f's_add_u32 s13, s13, {GE}')
    A(f'v_lshlrev_b32 v{ad}, 6, v{VC_}')
    A(f'v_lshl_add_u32 v{ad}, v{VHH}, 4, v{ad}')
    A(f'v_add_u32 v{ad}, s13, v{ad}')
    for tm in range(2):
        for tn in range(2):
            acc = (tm * 2 + tn) * 16
            readacc(A, EP, acc, 16)
            for p in range(2):
                A(f'v_cvt_pk_bf16_f32 v{EP+16}, v{EP+4*p}, v{EP+4*p+1}')
                A(f'v_cvt_pk_bf16_f32 v{EP+17}, v{EP+4*p+2}, v{EP+4*p+3}')
                A(f'v_cvt_pk_bf16_f32 v{EP+18}, v{EP+8+4*p}, v{EP+8+4*p+1}')
                A(f'v_cvt_pk_bf16_f32 v{EP+19}, v{EP+8+4*p+2}, v{EP+8+4*p+3}')
                A(f'ds_write_b128 v{ad}, v[{EP+16}:{EP+19}] offset:{tm*8192 + tn*2048 + 32*p}')
                A('s_nop 0')
            hook_tile(A, tm * 2 + tn)
    A('s_waitcnt lgkmcnt(0)')
    A('s_barrier')
    t = VT
    A(f'v_lshlrev_b32 v{t}, 4, v{VL}')
    A(f's_lshl_b32 s13, {W}, 13'); A(f's_add_u32 s13, s13, {GE}')
    A(f'v_add_u32 v{t+1}, s13, v{t}')
    for uu in range(8):
        A(f'ds_read_b128 v[{EP+4*uu}:{EP+4*uu+3}], v{t+1} offset:{1024*uu}')
    A(f's_lshl_b32 s13, {W}, 18')
    A(f's_add_u32 s{G_P}, s{G_OUT}, s13'); A(f's_addc_u32 s{G_P+1}, s{G_OUT+1}, 0')
    A(f'v_add_u32 v{t+2}, 4096, v{t}')
    hook_mid(A)
    for uu in range(8):
        A(f's_waitcnt lgkmcnt({7-uu})')
        A(f'global_store_dwordx4 v{t + (2 if uu >= 4 else 0)}, v[{EP+4*uu}:{EP+4*uu+3}], s[{G_P}:{G_P+1}] offset:{1024*(uu&3)} sc1')

def epi_b(A):
    W = f's{S_W}'
    ad, c15 = VT + 4, VT + 6
    epi_addr_rows(A, ad)
    A(f'v_and_b32 v{c15}, 15, v{VC_}')
    A(f's_lshl_b32 s13, s{E_NT}, 8'); A(f's_and_b32 s14, {W}, 1'); A('s_lshl_b32 s14, s14, 7'); A('s_add_u32 s13, s13, s14')
    A(f's_add_u32 s{G_P}, s{G_IN+12}, s13'); A(f's_addc_u32 s{G_P+1}, s{G_IN+13}, 0')
    A(f'v_lshlrev_b32 v{VT}, 3, v{VHH}')
    for tn in range(2):
        for q in range(4):
            A(f'global_load_dwordx2 v[{EP+40+(tn*4+q)*2}:{EP+40+(tn*4+q)*2+1}], v{VT}, s[{G_P}:{G_P+1}] offset:{tn*64+q*16}')
    A(f's_and_b32 s14, {W}, 1'); A('s_lshl_b32 s14, s14, 3')
    A('s_waitcnt vmcnt(0)')
    for tm in range(2):
        for tn in range(2):
            acc = (tm * 2 + tn) * 16
            readacc(A, EP, acc, 16)
            for q in range(4):
                bb = EP + 40 + (tn * 4 + q) * 2
                for x in range(4):
                    r_ = EP + 4 * q + x
                    src = bb + (x >> 1)
                    A(f'v_cvt_pk_bf16_f32 v{r_}, v{r_}, v{r_}')
                    A(f'v_and_b32 v{r_}, 0xffff0000, v{r_}')
                    if x & 1: A(f'v_and_b32 v{EP+20}, 0xffff0000, v{src}')
                    else: A(f'v_lshlrev_b32 v{EP+20}, 16, v{src}')
                    A(f'v_add_f32 v{r_}, v{r_}, v{EP+20}')
                A(f'v_cvt_pk_bf16_f32 v{EP+16}, v{EP+4*q}, v{EP+4*q+1}')
                A(f'v_cvt_pk_bf16_f32 v{EP+17}, v{EP+4*q+2}, v{EP+4*q+3}')
                A(f's_add_u32 s13, s14, {4*tn+q}')
                A(f'v_xor_b32 v{VT}, s13, v{c15}')
                A(f'v_lshl_add_u32 v{VT}, v{VT}, 4, v{ad}')
                A(f'v_lshl_add_u32 v{VT}, v{VHH}, 3, v{VT}')
                A(f'ds_write_b64 v{VT}, v[{EP+16}:{EP+17}] offset:{tm*8192}')
            hook_tile(A, tm * 2 + tn)
    A('s_waitcnt lgkmcnt(0)')
    A('s_barrier')

def wait_flag(A, off_sgpr, target):
    L = A.label('Lwf'); Lp = A.label('Lwf_p'); Ld = A.label('Lwf_d')
    A(f's_cmp_lg_u32 s{S_W}, 0')
    A(f's_cbranch_scc1 {L}')
    A(f's_add_u32 s13, s{off_sgpr}, {WS_SY}')
    A(f'v_mov_b32 v{VT}, s13')
    A(f'{Lp}:')
    A(f'global_load_dword v{VT+1}, v{VT}, s[{S_WS}:{S_WS+1}] sc1')
    A('s_waitcnt vmcnt(0)')
    A(f'v_readfirstlane_b32 s13, v{VT+1}')
    A(f's_cmp_ge_u32 s13, {target}')
    A(f's_cbranch_scc1 {Ld}')
    A('s_sleep 4')
    spin_check(A, Lp, Ld)
    A(f'{Ld}:')
    A(f'{L}:')
    A('s_barrier')

I_X, I_CNT, I_MAG, I_TOT, I_FIRST, I_PH, I_GW, I_HAVE = 56, 57, 58, 59, 60, 61, 62, 63

def phase_setup(A):
    A(f's_cmp_eq_u32 s{I_PH}, 0')
    A(f's_cselect_b32 s13, 0, 64')
    A(f's_movk_i32 s14, 110')
    A(f's_cselect_b32 s14, 64, s14')
    A(f's_cselect_b32 s15, 0, 1')
    A(f's_add_u32 s{I_FIRST}, s{I_GW}, 7'); A(f's_sub_u32 s{I_FIRST}, s{I_FIRST}, s15')
    A(f's_cmp_ge_u32 s{I_FIRST}, 7'); A(f's_cselect_b32 s15, 7, 0'); A(f's_sub_u32 s{I_FIRST}, s{I_FIRST}, s15')
    A(f's_add_u32 s{I_FIRST}, s{I_FIRST}, s13')
    A(f's_sub_u32 s{I_CNT}, s14, s{I_FIRST}'); A(f's_add_u32 s{I_CNT}, s{I_CNT}, 6')
    A(f's_mul_i32 s{I_CNT}, s{I_CNT}, 9363'); A(f's_lshr_b32 s{I_CNT}, s{I_CNT}, 16')
    A(f's_lshl_b32 s{I_TOT}, s{I_CNT}, 4')
    A(f's_mov_b32 s{I_MAG}, 10923')
    for cnt, mg in [(7, 9363), (9, 7282), (10, 6554)]:
        A(f's_cmp_eq_u32 s{I_CNT}, {cnt}'); A(f's_cselect_b32 s{I_MAG}, {mg}, s{I_MAG}')
    A(f's_mov_b32 s{I_X}, s{S_J}')

def fetch_next(A):
    Ltry = A.label('Lf_try'); Lnp = A.label('Lf_np'); Lb = A.label('Lf_b'); Lnone = A.label('Lf_none'); Ld = A.label('Lf_d')
    A(f'{Ltry}:')
    A(f's_cmp_ge_u32 s{I_PH}, 2'); A(f's_cbranch_scc1 {Lb}')
    A(f's_cmp_ge_u32 s{I_X}, s{I_TOT}'); A(f's_cbranch_scc1 {Lnp}')
    A(f's_mul_i32 s{G_TT}, s{I_X}, s{I_MAG}'); A(f's_lshr_b32 s{G_TT}, s{G_TT}, 16')
    A(f's_mul_i32 s13, s{G_TT}, s{I_CNT}'); A(f's_sub_u32 s13, s{I_X}, s13')
    A(f's_mul_i32 s13, s13, 7'); A(f's_add_u32 s13, s13, s{I_FIRST}')
    A(f's_lshr_b32 s{G_TYPE}, s13, 5')
    A(f's_and_b32 s{G_NT}, s13, 31')
    A(f's_add_u32 s{I_X}, s{I_X}, 32')
    A(f's_mov_b32 s{I_HAVE}, 1')
    A(f's_branch {Ld}')
    A(f'{Lnp}:')
    A(f's_add_u32 s{I_PH}, s{I_PH}, 1')
    A(f's_cmp_ge_u32 s{I_PH}, 2'); A(f's_cbranch_scc1 {Lb}')
    phase_setup(A)
    A(f's_branch {Ltry}')
    A(f'{Lb}:')
    A(f's_cmp_ge_u32 s{I_PH}, 3'); A(f's_cbranch_scc1 {Lnone}')
    A(f's_mov_b32 s{I_PH}, 3')
    A(f's_mul_i32 s13, s{S_J}, 7'); A(f's_add_u32 s13, s13, s{I_GW}')
    A(f's_cmp_ge_u32 s13, 64'); A(f's_cbranch_scc1 {Lnone}')
    A(f's_lshr_b32 s{G_TT}, s13, 2'); A(f's_and_b32 s{G_NT}, s13, 3'); A(f's_mov_b32 s{G_TYPE}, 4')
    A(f's_mov_b32 s{I_HAVE}, 1')
    A(f's_branch {Ld}')
    A(f'{Lnone}:')
    A(f's_mov_b32 s{I_HAVE}, 0')
    A(f'{Ld}:')

def epilogue(A):
    Lv = A.label('Le_v'); Lb = A.label('Le_b'); Lh = A.label('Le_h'); Ld = A.label('Le_done')
    A('s_nop 15'); A('s_nop 3')
    A(f's_cmp_eq_u32 s{E_TYPE}, 1'); A(f's_cbranch_scc1 {Lv}')
    A(f's_cmp_eq_u32 s{E_TYPE}, 4'); A(f's_cbranch_scc1 {Lb}')
    A(f's_cmp_eq_u32 s{E_TYPE}, 3'); A(f's_cbranch_scc1 {Lh}')
    epi_kq(A, False)
    A(f's_cmp_eq_u32 s{E_TYPE}, 0')
    A(f's_mov_b32 s13, {WS_Q}')
    A(f's_cselect_b32 s13, {WS_K}, s13')
    A(f's_lshl_b32 s14, s{E_TT}, 20'); A('s_add_u32 s13, s13, s14')
    A(f's_lshl_b32 s14, s{E_NT}, 8'); A('s_add_u32 s13, s13, s14')
    A(f's_add_u32 s{G_OUT}, s{S_WS}, s13'); A(f's_addc_u32 s{G_OUT+1}, s{S_WS+1}, 0')
    rows_out(A, 8192)
    A(f's_cmp_eq_u32 s{E_TYPE}, 0')
    A(f's_mov_b32 s{E_FLG}, {FLG_Q}')
    A(f's_cselect_b32 s{E_FLG}, {FLG_KV}, s{E_FLG}')
    A(f's_lshl_b32 s14, s{E_TT}, 7'); A(f's_add_u32 s{E_FLG}, s{E_FLG}, s14')
    A(f's_lshl_b32 s14, s{E_NT}, 2'); A(f's_add_u32 s{E_FLG}, s{E_FLG}, s14')
    A(f's_branch {Ld}')
    A(f'{Lh}:')
    epi_kq(A, True)
    A(f's_mul_i32 s13, s{E_TT}, {128*3584}'); A(f's_add_u32 s13, s13, {WS_HH}')
    A(f's_lshl_b32 s14, s{E_NT}, 8'); A('s_add_u32 s13, s13, s14')
    A(f's_add_u32 s{G_OUT}, s{S_WS}, s13'); A(f's_addc_u32 s{G_OUT+1}, s{S_WS+1}, 0')
    rows_out(A, 3584)
    A(f's_lshl_b32 s{E_FLG}, s{E_TT}, 7'); A(f's_add_u32 s{E_FLG}, s{E_FLG}, {FLG_H}')
    A(f's_branch {Ld}')
    A(f'{Lv}:')
    A(f's_lshl_b32 s13, s{E_TT}, 20'); A(f's_lshl_b32 s14, s{E_NT}, 13'); A('s_add_u32 s13, s13, s14')
    A(f's_add_u32 s13, s13, {WS_VT}')
    A(f's_add_u32 s{G_OUT}, s{S_WS}, s13'); A(f's_addc_u32 s{G_OUT+1}, s{S_WS+1}, 0')
    epi_v(A)
    A(f's_lshl_b32 s{E_FLG}, s{E_TT}, 7'); A(f's_add_u32 s{E_FLG}, s{E_FLG}, {FLG_KV}')
    A(f's_lshl_b32 s14, s{E_NT}, 2'); A(f's_add_u32 s{E_FLG}, s{E_FLG}, s14')
    A(f's_branch {Ld}')
    A(f'{Lb}:')
    epi_b(A)
    A(f's_lshl_b32 s13, s{E_TT}, 17'); A(f's_add_u32 s13, s13, {WS_BO}')
    A(f's_lshl_b32 s14, s{E_NT}, 8'); A('s_add_u32 s13, s13, s14')
    A(f's_add_u32 s{G_OUT}, s{S_WS}, s13'); A(f's_addc_u32 s{G_OUT+1}, s{S_WS+1}, 0')
    rows_out(A, 1024)
    A(f's_lshl_b32 s{E_FLG}, s{E_TT}, 7'); A(f's_add_u32 s{E_FLG}, s{E_FLG}, {FLG_B}')
    A(f'{Ld}:')
    A(f's_add_u32 s{E_FLG}, s{E_FLG}, {WS_SY}')
    A(f's_mov_b32 s{E_PEND}, 1')

def flush_pending(A):
    A('s_waitcnt vmcnt(0)')
    A('s_barrier')
    send_pending(A)

def gen_w1(A):
    load_inputs(A)
    lane_consts(A)
    A('s_waitcnt lgkmcnt(0)')
    if PROF:
        A(f's_lshl_b32 s13, s{S_G}, 5'); A(f's_add_u32 s13, s13, s{S_J}'); A(f's_lshl_b32 s13, s13, 2'); A(f's_add_u32 s13, s13, s{S_W}')
        A(f's_lshl_b32 s13, s13, 10'); A(f's_add_u32 s13, s13, {WS_TS + 0x400000}')
        A(f's_add_u32 s{G_TSP}, s{S_WS}, s13'); A(f's_addc_u32 s{G_TSP+1}, s{S_WS+1}, 0')
    A(f's_sub_u32 s{I_GW}, s{S_G}, 1')
    A(f's_mov_b32 s{I_PH}, 0')
    A(f's_mov_b32 s{E_PEND}, 0')
    phase_setup(A)
    fetch_next(A)
    item_setup(A)
    issue_stage(A, 0, False); issue_stage(A, 1, False)
    Lloop = A.label('Lw1_loop'); Lv = A.label('Lw1_v'); Lb = A.label('Lw1_b'); Lk = A.label('Lw1_kdone'); Lnn = A.label('Lw1_nonext'); Ldone = A.label('Lw1_done')
    Lwb = A.label('Lw1_waitb')
    A(f'{Lloop}:')
    gst(A, 0); gst(A, 1)
    A(f's_cmp_eq_u32 s{G_TYPE}, 1'); A(f's_cbranch_scc1 {Lv}')
    A(f's_cmp_eq_u32 s{G_TYPE}, 4'); A(f's_cbranch_scc1 {Lb}')
    kloop(A, True, False)
    A(f's_branch {Lk}')
    A(f'{Lv}:')
    kloop(A, False, False)
    A(f's_branch {Lk}')
    A(f'{Lb}:')
    kloop(A, True, True)
    A(f'{Lk}:')
    A(f's_mov_b32 s{E_TYPE}, s{G_TYPE}'); A(f's_mov_b32 s{E_TT}, s{G_TT}'); A(f's_mov_b32 s{E_NT}, s{G_NT}')
    fetch_next(A)
    A(f's_cmp_eq_u32 s{I_HAVE}, 0'); A(f's_cbranch_scc1 {Lnn}')
    A(f's_cmp_eq_u32 s{G_TYPE}, 4'); A(f's_cbranch_scc1 {Lwb}')
    item_setup(A)
    A('s_barrier')
    def ht(A_, i):
        for ins in stage_pieces(0, False)[i]: A_(ins)
    def hm(A_):
        issue_stage(A_, 1, False)
    HOOK['tile'] = ht; HOOK['mid'] = hm
    epilogue(A)
    HOOK['tile'] = None; HOOK['mid'] = None
    gst(A, 4); gst(A, 5, flush=True)
    A(f's_branch {Lloop}')
    A(f'{Lwb}:')
    epilogue(A)
    flush_pending(A)
    gst(A, 4); gst(A, 5, flush=True)
    A(f's_lshl_b32 s{G_T}, s{G_TT}, 7'); A(f's_add_u32 s{G_T}, s{G_T}, {FLG_H}')
    wait_flag(A, G_T, 14)
    item_setup(A)
    issue_stage(A, 0, True); issue_stage(A, 1, True)
    A(f's_branch {Lloop}')
    A(f'{Lnn}:')
    epilogue(A)
    flush_pending(A)
    gst(A, 4); gst(A, 5, flush=True)
    A(f'{Ldone}:')
```

```python
from asmlib import *
from layout import *

def bf16_round(A, dst, src):
    A(f'v_cvt_pk_bf16_f32 {v(dst)}, {v(src)}, {v(src)}')
    A(f'v_and_b32 {v(dst)}, 0xffff0000, {v(dst)}')

def ln_row(A, X, OUT, t):
    sm, va, tmp, mb, d0 = t, t + 1, t + 2, t + 3, t + 4
    A(f'v_add_f32 {v(sm)}, {v(X)}, {v(X+1)}')
    for i in range(2, 8): A(f'v_add_f32 {v(sm)}, {v(sm)}, {v(X+i)}')
    allreduce(A, 'v_add_f32', sm, tmp)
    A(f'v_mul_f32 {v(sm)}, 0x3b000000, {v(sm)}')
    A(f'v_sub_f32 {v(d0)}, {v(X)}, {v(sm)}')
    A(f'v_mul_f32 {v(va)}, {v(d0)}, {v(d0)}')
    for i in range(1, 8):
        A(f'v_sub_f32 {v(d0)}, {v(X+i)}, {v(sm)}')
        A(f'v_fmac_f32 {v(va)}, {v(d0)}, {v(d0)}')
    allreduce(A, 'v_add_f32', va, tmp)
    A(f'v_mul_f32 {v(va)}, 0x3b000000, {v(va)}')
    bf16_round(A, va, va)
    A(f'v_add_f32 {v(va)}, 0x3727c5ac, {v(va)}')
    bf16_round(A, va, va)
    A(f'v_sqrt_f32 {v(va)}, {v(va)}')
    A('s_nop 0')
    bf16_round(A, va, va)
    A(f'v_rcp_f32 {v(va)}, {v(va)}')
    bf16_round(A, mb, sm)
    for i in range(8):
        A(f'v_sub_f32 {v(OUT+i)}, {v(X+i)}, {v(mb)}')
    for i in range(0, 8, 2):
        A(f'v_cvt_pk_bf16_f32 {v(d0)}, {v(OUT+i)}, {v(OUT+i+1)}')
        A(f'v_lshlrev_b32 {v(OUT+i)}, 16, {v(d0)}')
        A(f'v_and_b32 {v(OUT+i+1)}, 0xffff0000, {v(d0)}')
    for i in range(8):
        A(f'v_mul_f32 {v(OUT+i)}, {v(OUT+i)}, {v(va)}')

def unpack8(A, dst, src):
    for i in range(4):
        A(f'v_lshlrev_b32 {v(dst+2*i)}, 16, {v(src+i)}')
        A(f'v_and_b32 {v(dst+2*i+1)}, 0xffff0000, {v(src+i)}')
def pack8(A, dst, src):
    for i in range(4):
        A(f'v_cvt_pk_bf16_f32 {v(dst+i)}, {v(src+2*i)}, {v(src+2*i+1)}')

def gen_prep(A, name):
    kernel_header(A, name)
    Ldone = A.label('Lprep_done')
    A(f's_cmp_ge_u32 s2, 256')
    A(f's_cbranch_scc1 {Ldone}')
    A('s_load_dwordx2 s[4:5], s[0:1], 0')
    A('s_load_dwordx2 s[6:7], s[0:1], 112')
    A('s_lshl_b32 s3, s2, 12')
    A('v_lshlrev_b32 v1, 4, v0')
    A('v_add_u32 v1, s3, v1')
    A('v_mov_b32 v4, 0'); A('v_mov_b32 v5, 0'); A('v_mov_b32 v6, 0'); A('v_mov_b32 v7, 0')
    A('v_and_b32 v2, 63, v0')
    A('v_lshrrev_b32 v3, 6, v0')
    A('v_lshlrev_b32 v3, 11, v3')
    A('v_lshl_add_u32 v2, v2, 4, v3')
    A('s_lshl_b32 s3, s2, 13')
    A('v_add_u32 v2, s3, v2')
    A('s_waitcnt lgkmcnt(0)')
    A('global_load_dwordx4 v[8:11], v2, s[4:5]')
    A('global_load_dwordx4 v[12:15], v2, s[4:5] offset:1024')
    A(f's_add_u32 s8, s6, {WS_SY}')
    A('s_addc_u32 s9, s7, 0')
    A('global_store_dwordx4 v1, v[4:7], s[8:9]')
    Lnos = A.label('Lprep_nosent')
    A('s_cmp_ge_u32 s2, 6')
    A(f's_cbranch_scc1 {Lnos}')
    A('v_mov_b32 v4, -1'); A('v_mov_b32 v5, -1'); A('v_mov_b32 v6, -1'); A('v_mov_b32 v7, -1')
    A(f's_add_u32 s8, s6, {WS_MR}')
    A('s_addc_u32 s9, s7, 0')
    A('global_store_dwordx4 v1, v[4:7], s[8:9]')
    A(f'{Lnos}:')
    A(f's_add_u32 s10, s6, {WS_XN}'); A('s_addc_u32 s11, s7, 0')
    A(f's_add_u32 s12, s6, {WS_Y}'); A('s_addc_u32 s13, s7, 0')
    for rowi in range(2):
        src = 8 + 4 * rowi
        A(f's_waitcnt vmcnt({1 - rowi + (2 if False else 0)})' if False else '')
        if rowi == 0: A('s_waitcnt vmcnt(0)')
        unpack8(A, 16, src)
        ln_row(A, 16, 24, 40)
        pack8(A, 32, 24)
        A(f'global_store_dwordx4 v2, v[32:35], s[10:11] offset:{1024*rowi}')
        unpack8(A, 16, 32)
        ln_row(A, 16, 24, 40)
        pack8(A, 36, 24)
        A(f'global_store_dwordx4 v2, v[36:39], s[12:13] offset:{1024*rowi}')
        A('s_nop 1')
    A(f'{Ldone}:')
    A('s_endpgm')
    kernel_desc(A, name, 48, 24, 48)
```

```python
from asmlib import *
from layout import *
from k_common import *

L_WS = 0
L_RED = 131072
W_SEG, W_TT = 16, 17
W_QB, W_KB, W_KMB, W_VTB, W_VMB, W_OB = 18, 20, 22, 24, 26, 28
W_XB, W_BB, W_OUTB = 30, 32, 34
W_C1 = 36
W_WO, W_X, W_OUT = 38, 40, 42
W_T = 44
W_TSP = 64
VL, VC, VG, VI = 1, 2, 3, 4
V_QO, V_KO, V_KMO, V_VTO, V_VMO, V_OO = 5, 6, 7, 8, 9, 10
V_FO, V_FT = 11, 12
V_D = 13
V_AR = 14
V_BO = 15
V_RW, V_RR = 16, 17
V_XO = 18
T0, T1, T2, T3 = 20, 21, 22, 23
QF = 24
KF = 40
KMF = 72
VF = 88
VMF = 104
ST = 112
SM = 120
PT = 124
PM = 128
OA = 132
XB = 148
AF = 152
ACC = 168
RD = 176

PROF = False
def st(A, k, flush=False):
    if not PROF: return
    A(f's_memrealtime s[{66+2*k}:{66+2*k+1}]')
    if flush:
        A('s_waitcnt lgkmcnt(0)')
        A('s_mov_b64 exec, 1')
        A(f'v_mov_b32 v{T1}, 0')
        for kk in range(k + 1):
            A(f'v_mov_b32 v{T0}, s{66+2*kk}')
            A(f'global_store_dword v{T1}, v{T0}, s[{W_TSP}:{W_TSP+1}] offset:{4*kk}')
            A('s_nop 1')
        A(f'v_mov_b32 v{T0}, s{W_SEG}')
        A(f'global_store_dword v{T1}, v{T0}, s[{W_TSP}:{W_TSP+1}] offset:60')
        A('s_mov_b64 exec, -1')
        A(f's_add_u32 s{W_TSP}, s{W_TSP}, 64'); A(f's_addc_u32 s{W_TSP+1}, s{W_TSP+1}, 0')

def gen_w2(A):
    W = f's{S_W}'; J = f's{S_J}'
    ws = S_WS
    A(f's_load_dwordx2 s[{W_WO}:{W_WO+1}], s[0:1], 40')
    A(f's_load_dwordx2 s[{W_X}:{W_X+1}], s[0:1], 0')
    A(f's_load_dwordx2 s[{W_OUT}:{W_OUT+1}], s[0:1], 96')
    if PROF:
        A(f's_lshl_b32 s13, s{S_G}, 5'); A(f's_add_u32 s13, s13, {J}'); A(f's_lshl_b32 s13, s13, 2'); A(f's_add_u32 s13, s13, {W}')
        A(f's_lshl_b32 s13, s13, 10'); A(f's_add_u32 s13, s13, {WS_TS + 0x600000}')
        A(f's_add_u32 s{W_TSP}, s{ws}, s13'); A(f's_addc_u32 s{W_TSP+1}, s{ws+1}, 0')
    A(f'v_and_b32 v{VL}, 63, v0')
    A(f'v_and_b32 v{VC}, 15, v0')
    A(f'v_lshrrev_b32 v{VG}, 4, v{VL}')
    A(f'v_lshrrev_b32 v{VI}, 2, v{VC}'); A(f'v_lshlrev_b32 v{VI}, 1, v{VI}')
    A(f'v_and_b32 v{T0}, 1, v{VC}'); A(f'v_add_u32 v{VI}, v{VI}, v{T0}')
    A('s_waitcnt lgkmcnt(0)')
    A(f'v_lshrrev_b32 v{T0}, 1, v{VL}'); A(f'v_lshlrev_b32 v{T0}, 10, v{T0}')
    A(f'v_and_b32 v{T1}, 1, v{VL}'); A(f'v_lshl_add_u32 v{T0}, v{T1}, 4, v{T0}')
    A(f's_lshl_b32 s13, {J}, 5'); A(f's_lshl_b32 s14, {W}, 20'); A('s_add_u32 s13, s13, s14')
    A(f's_add_u32 s14, s{W_WO}, s13'); A(f's_addc_u32 s15, s{W_WO+1}, 0')
    A(f's_lshl_b32 s13, {W}, 15')
    for u in range(32):
        A('s_mov_b32 m0, s13')
        A('s_add_u32 s13, s13, 1024')
        A(f'global_load_lds_dwordx4 v{T0}, s[14:15]')
        A('s_add_u32 s14, s14, 32768'); A('s_addc_u32 s15, s15, 0')
    it, eh = W_T, W_T + 1
    A(f's_and_b32 s{it}, {W}, 1'); A(f's_lshr_b32 s{eh}, {W}, 1')
    A(f's_lshl_b32 s13, s{it}, 4')
    A(f'v_add_u32 v{T0}, s13, v{VC}')
    A(f'v_lshlrev_b32 v{T0}, 13, v{T0}')
    A(f'v_lshl_add_u32 v{V_QO}, v{VG}, 4, v{T0}')
    A(f's_lshl_b32 s13, s{eh}, 7')
    A(f'v_add_u32 v{V_OO}, s13, v{V_QO}')
    A(f'v_lshlrev_b32 v{T0}, 13, v{VC}')
    A(f'v_lshl_add_u32 v{V_KO}, v{VG}, 4, v{T0}')
    A(f'v_lshlrev_b32 v{T0}, 8, v{VI}')
    A(f'v_lshl_add_u32 v{V_KMO}, v{VG}, 4, v{T0}')
    A(f's_lshl_b32 s13, s{eh}, 12')
    A(f'v_lshlrev_b32 v{T0}, 6, v{VC}')
    A(f'v_lshl_add_u32 v{T0}, v{VG}, 4, v{T0}')
    A(f'v_add_u32 v{V_VTO}, s13, v{T0}')
    A(f's_lshl_b32 s13, s{eh}, 11')
    A(f'v_lshlrev_b32 v{T0}, 5, v{VC}')
    A(f'v_lshl_add_u32 v{T0}, v{VG}, 3, v{T0}')
    A(f'v_add_u32 v{V_VMO}, s13, v{T0}')
    A(f's_lshl_b32 s13, s{it}, 4')
    A(f'v_add_u32 v{T0}, s13, v{VC}')
    A(f'v_lshlrev_b32 v{T1}, 2, v{VG}')
    A(f'v_sub_u32 v{V_D}, v{T0}, v{T1}')
    A(f'v_lshrrev_b32 v{T0}, 2, v{VC}')
    A(f'v_lshl_add_u32 v{T0}, v{VG}, 2, v{T0}')
    A(f'v_lshlrev_b32 v{T0}, 5, v{T0}')
    A(f'v_and_b32 v{T1}, 3, v{VC}')
    A(f'v_lshl_add_u32 v{T0}, v{T1}, 3, v{T0}')
    A(f's_lshl_b32 s13, {W}, 15')
    A(f'v_add_u32 v{V_AR}, s13, v{T0}')
    A(f's_lshl_b32 s13, {W}, 11')
    A(f'v_add_u32 v{V_BO}, s13, v{V_KO}')
    A(f'v_lshlrev_b32 v{T0}, 4, v{VL}')
    A(f's_add_u32 s13, s13, {L_RED}')
    A(f'v_add_u32 v{V_RW}, s13, v{T0}')
    A(f's_lshl_b32 s13, s{it}, 10'); A(f's_add_u32 s13, s13, {L_RED}')
    A(f'v_add_u32 v{V_RR}, s13, v{T0}')
    A(f's_lshl_b32 s13, s{it}, 4')
    A(f'v_add_u32 v{T0}, s13, v{VC}')
    A(f'v_lshlrev_b32 v{T0}, 10, v{T0}')
    A(f'v_lshl_add_u32 v{T0}, v{VG}, 3, v{T0}')
    A(f's_lshl_b32 s13, {J}, 5')
    A(f'v_add_u32 v{V_XO}, s13, v{T0}')
    A(f's_mov_b32 s{W_C1}, 0x3e0293ee'); A(f's_mov_b32 s{W_C1+1}, 0x3e0293ee')
    A(f's_sub_u32 s{W_SEG}, s{S_G}, 1')
    A('s_waitcnt vmcnt(0)')
    A('s_barrier')
    Lloop = A.label('Lw2_loop'); Ldone = A.label('Lw2_done')
    A(f'{Lloop}:')
    A(f's_cmp_ge_u32 s{W_SEG}, 64'); A(f's_cbranch_scc1 {Ldone}')
    st(A, 0)
    A(f's_lshr_b32 s{W_TT}, s{W_SEG}, 2')
    def ptr(sp, base, mul_seg, mul_j):
        A(f's_mul_i32 s13, s{W_SEG}, {mul_seg}')
        A(f's_mul_i32 s14, {J}, {mul_j}')
        A('s_add_u32 s13, s13, s14'); A(f's_add_u32 s13, s13, {base}')
        A(f's_add_u32 s{sp}, s{ws}, s13'); A(f's_addc_u32 s{sp+1}, s{ws+1}, 0')
    ptr(W_QB, WS_Q, 32 * 8192, 256)
    ptr(W_KB, WS_K, 32 * 8192, 256)
    ptr(W_KMB, WS_KM, 65536, 2048)
    ptr(W_VTB, WS_VT, 32 * 8192, 8192)
    ptr(W_VMB, WS_VM, 131072, 4096)
    ptr(W_OB, WS_O, 32 * 8192, 256)
    A(f's_lshl_b32 s13, {J}, 4'); A(f's_add_u32 s13, s13, {WS_SY + FLG_CHAIN}')
    A(f'v_lshlrev_b32 v{V_FO}, 2, v{VL}'); A(f'v_add_u32 v{V_FO}, s13, v{V_FO}')
    A(f's_add_u32 s13, s{W_SEG}, 1'); A(f'v_mov_b32 v{V_FT}, s13')
    A(f's_lshl_b32 s13, s{W_TT}, 7'); A(f's_lshl_b32 s14, {J}, 2'); A('s_add_u32 s13, s13, s14')
    A(f's_add_u32 s14, s13, {WS_SY + FLG_KV}'); A(f's_add_u32 s15, s13, {WS_SY + FLG_Q}')
    A(f'v_cmp_eq_u32 vcc, 4, v{VL}')
    A(f'v_mov_b32 v{T0}, s14'); A(f'v_mov_b32 v{T1}, 2')
    A(f'v_cndmask_b32 v{V_FO}, v{V_FO}, v{T0}, vcc'); A(f'v_cndmask_b32 v{V_FT}, v{V_FT}, v{T1}, vcc')
    A(f'v_cmp_lt_u32 vcc, 4, v{VL}')
    A(f'v_mov_b32 v{T0}, s15'); A(f'v_mov_b32 v{T1}, 1')
    A(f'v_cndmask_b32 v{V_FO}, v{V_FO}, v{T0}, vcc'); A(f'v_cndmask_b32 v{V_FT}, v{V_FT}, v{T1}, vcc')
    Lp = A.label('Lw2_fp'); Ld = A.label('Lw2_fd')
    A(f'{Lp}:')
    A(f'global_load_dword v{T0}, v{V_FO}, s[{ws}:{ws+1}] sc1')
    A('s_waitcnt vmcnt(0)')
    A(f'v_cmp_lt_u32 vcc, v{T0}, v{V_FT}')
    A(f's_cbranch_vccz {Ld}')
    A('s_sleep 8')
    spin_check(A, Lp, Ld)
    A(f'{Ld}:')
    st(A, 1)
    for ks in range(4):
        A(f'global_load_dwordx4 v[{QF+4*ks}:{QF+4*ks+3}], v{V_QO}, s[{W_QB}:{W_QB+1}] offset:{64*ks} sc1')
    for ks in range(4):
        A(f'global_load_dwordx4 v[{KF+4*ks}:{KF+4*ks+3}], v{V_KO}, s[{W_KB}:{W_KB+1}] offset:{64*ks} sc1')
    A(f's_add_u32 s14, s{W_KB}, {16*8192}'); A(f's_addc_u32 s15, s{W_KB+1}, 0')
    for ks in range(4):
        A(f'global_load_dwordx4 v[{KF+16+4*ks}:{KF+16+4*ks+3}], v{V_KO}, s[14:15] offset:{64*ks} sc1')
    for ks in range(4):
        A(f'global_load_dwordx4 v[{KMF+4*ks}:{KMF+4*ks+3}], v{V_KMO}, s[{W_KMB}:{W_KMB+1}] offset:{64*ks} sc1')
    for T in range(4):
        A(f'global_load_dwordx4 v[{VF+4*T}:{VF+4*T+3}], v{V_VTO}, s[{W_VTB}:{W_VTB+1}] offset:{1024*T} sc1')
    for T in range(4):
        A(f'global_load_dwordx2 v[{VMF+2*T}:{VMF+2*T+1}], v{V_VMO}, s[{W_VMB}:{W_VMB+1}] offset:{512*T} sc1')
    A(f's_lshl_b32 s13, s{W_SEG}, 15')
    A(f's_add_u32 s{W_XB}, s{W_X}, s13'); A(f's_addc_u32 s{W_XB+1}, s{W_X+1}, 0')
    A(f's_add_u32 s{W_OUTB}, s{W_OUT}, s13'); A(f's_addc_u32 s{W_OUTB+1}, s{W_OUT+1}, 0')
    A(f's_add_u32 s13, s13, {WS_BO}')
    A(f's_add_u32 s{W_BB}, s{ws}, s13'); A(f's_addc_u32 s{W_BB+1}, s{ws+1}, 0')
    A('s_waitcnt vmcnt(12)')
    for ks in range(4):
        for T in range(2):
            c_ = '0' if ks == 0 else f'v[{ST+4*T}:{ST+4*T+3}]'
            A(f'v_mfma_f32_16x16x32_bf16 v[{ST+4*T}:{ST+4*T+3}], v[{KF+(T*4+ks)*4}:{KF+(T*4+ks)*4+3}], v[{QF+4*ks}:{QF+4*ks+3}], {c_}')
    A('s_waitcnt vmcnt(8)')
    for ks in range(4):
        c_ = '0' if ks == 0 else f'v[{SM}:{SM+3}]'
        A(f'v_mfma_f32_16x16x32_bf16 v[{SM}:{SM+3}], v[{KMF+4*ks}:{KMF+4*ks+3}], v[{QF+4*ks}:{QF+4*ks+3}], {c_}')
    A('s_nop 7')
    A(f'v_mov_b32 v{T2}, 0xff800000')
    A(f'v_subrev_u32 v{T3}, 16, v{V_D}')
    for T in range(2):
        for rr in range(4):
            A(f'v_cmp_le_i32 vcc, {rr}, v{V_D if T == 0 else T3}')
            A('s_nop 1')
            A(f'v_cndmask_b32 v{ST+4*T+rr}, v{T2}, v{ST+4*T+rr}, vcc')
    mx, t1 = T0, T1
    A(f'v_max3_f32 v{mx}, v{ST}, v{ST+1}, v{ST+2}')
    A(f'v_max3_f32 v{t1}, v{ST+3}, v{ST+4}, v{ST+5}')
    A(f'v_max3_f32 v{mx}, v{mx}, v{ST+6}, v{ST+7}')
    A(f'v_max3_f32 v{t1}, v{t1}, v{SM}, v{SM+1}')
    A(f'v_max3_f32 v{mx}, v{mx}, v{SM+2}, v{SM+3}')
    A(f'v_max_f32 v{mx}, v{mx}, v{t1}')
    A(f'v_mov_b32 v{t1}, v{mx}'); A('s_nop 1')
    A(f'v_permlane16_swap_b32 v{mx}, v{t1}'); A(f'v_max_f32 v{mx}, v{mx}, v{t1}')
    A(f'v_mov_b32 v{t1}, v{mx}'); A('s_nop 1')
    A(f'v_permlane32_swap_b32 v{mx}, v{t1}'); A(f'v_max_f32 v{mx}, v{mx}, v{t1}')
    A(f'v_mul_f32 v{mx}, s{W_C1}, v{mx}')
    for k in range(8): A(f'v_fma_f32 v{ST+k}, v{ST+k}, s{W_C1}, -v{mx}')
    for k in range(4): A(f'v_fma_f32 v{SM+k}, v{SM+k}, s{W_C1}, -v{mx}')
    for k in range(8): A(f'v_exp_f32 v{ST+k}, v{ST+k}')
    for k in range(4): A(f'v_exp_f32 v{SM+k}, v{SM+k}')
    A('s_nop 0')
    for k in range(4): A(f'v_cvt_pk_bf16_f32 v{PT+k}, v{ST+2*k}, v{ST+2*k+1}')
    for k in range(2): A(f'v_cvt_pk_bf16_f32 v{PM+k}, v{SM+2*k}, v{SM+2*k+1}')
    A('s_waitcnt vmcnt(0)')
    for T in range(4):
        A(f'v_mfma_f32_16x16x32_bf16 v[{OA+4*T}:{OA+4*T+3}], v[{VF+4*T}:{VF+4*T+3}], v[{PT}:{PT+3}], 0')
    for T in range(4):
        A(f'v_mfma_f32_16x16x16_bf16 v[{OA+4*T}:{OA+4*T+3}], v[{VMF+2*T}:{VMF+2*T+1}], v[{PM}:{PM+1}], v[{OA+4*T}:{OA+4*T+3}]')
    ls = T0
    A(f'v_add_f32 v{SM}, v{SM}, v{SM+1}'); A(f'v_add_f32 v{SM+2}, v{SM+2}, v{SM+3}'); A(f'v_add_f32 v{SM}, v{SM}, v{SM+2}')
    A(f'v_add_f32 v{ST}, v{ST}, v{ST+1}'); A(f'v_add_f32 v{ST+2}, v{ST+2}, v{ST+3}')
    A(f'v_add_f32 v{ST+4}, v{ST+4}, v{ST+5}'); A(f'v_add_f32 v{ST+6}, v{ST+6}, v{ST+7}')
    A(f'v_add_f32 v{ST}, v{ST}, v{ST+2}'); A(f'v_add_f32 v{ST+4}, v{ST+4}, v{ST+6}'); A(f'v_add_f32 v{ST}, v{ST}, v{ST+4}')
    A(f'v_fma_f32 v{ls}, v{SM}, 0.5, v{ST}')
    A(f'v_mov_b32 v{t1}, v{ls}'); A('s_nop 1')
    A(f'v_permlane16_swap_b32 v{ls}, v{t1}'); A(f'v_add_f32 v{ls}, v{ls}, v{t1}')
    A(f'v_mov_b32 v{t1}, v{ls}'); A('s_nop 1')
    A(f'v_permlane32_swap_b32 v{ls}, v{t1}'); A(f'v_add_f32 v{ls}, v{ls}, v{t1}')
    A(f'v_rcp_f32 v{ls}, v{ls}')
    A('s_nop 3')
    for k in range(16): A(f'v_mul_f32 v{OA+k}, v{OA+k}, v{ls}')
    for pr in range(2):
        for k in range(4): A(f'v_cvt_pk_bf16_f32 v{OA+8*pr+k}, v{OA+8*pr+2*k}, v{OA+8*pr+2*k+1}')
        A(f'global_store_dwordx4 v{V_OO}, v[{OA+8*pr}:{OA+8*pr+3}], s[{W_OB}:{W_OB+1}] offset:{64*pr} sc1')
    st(A, 2)
    A(f'global_load_dwordx2 v[{XB}:{XB+1}], v{V_XO}, s[{W_XB}:{W_XB+1}]')
    A('s_waitcnt vmcnt(0)')
    A('s_barrier')
    L = A.label('Lw2_sig')
    A(f's_lshl_b32 s13, s{W_SEG}, 7'); A(f's_add_u32 s13, s13, {WS_SY + FLG_O}')
    A(f's_cmp_lg_u32 {W}, 0'); A(f's_cbranch_scc1 {L}')
    A(f'v_mov_b32 v{T0}, s13'); A(f'v_mov_b32 v{T1}, 1')
    A('s_mov_b64 exec, 1')
    A(f'global_atomic_add v{T0}, v{T1}, s[{ws}:{ws+1}]')
    A('s_mov_b64 exec, -1')
    A(f'{L}:')
    st(A, 3)
    A(f's_lshl_b32 s14, s{W_TT}, 7'); A(f's_add_u32 s14, s14, {WS_SY + FLG_B}')
    A(f'v_cmp_eq_u32 vcc, 0, v{VL}')
    A(f'v_mov_b32 v{T0}, s14'); A(f'v_mov_b32 v{T1}, s13')
    A(f'v_cndmask_b32 v{V_FO}, v{T0}, v{T1}, vcc')
    A(f'v_mov_b32 v{T0}, 4'); A(f'v_mov_b32 v{T1}, 32')
    A(f'v_cndmask_b32 v{V_FT}, v{T0}, v{T1}, vcc')
    Lp = A.label('Lw2_op'); Ld = A.label('Lw2_od')
    A(f'{Lp}:')
    A(f'global_load_dword v{T0}, v{V_FO}, s[{ws}:{ws+1}] sc1')
    A('s_waitcnt vmcnt(0)')
    A(f'v_cmp_lt_u32 vcc, v{T0}, v{V_FT}')
    A(f's_cbranch_vccz {Ld}')
    A('s_sleep 2')
    spin_check(A, Lp, Ld)
    A(f'{Ld}:')
    st(A, 4)
    A(f's_mul_i32 s13, s{W_SEG}, {32*8192}'); A(f's_add_u32 s13, s13, {WS_O}')
    A(f's_add_u32 s{W_QB}, s{ws}, s13'); A(f's_addc_u32 s{W_QB+1}, s{ws+1}, 0')
    A(f's_add_u32 s{W_KB}, s{W_QB}, {16*8192}'); A(f's_addc_u32 s{W_KB+1}, s{W_QB+1}, 0')
    A(f'global_load_dwordx2 v[{XB+2}:{XB+3}], v{V_XO}, s[{W_BB}:{W_BB+1}] sc1')
    def issue_batch(bt):
        for kl in range(16):
            ksl = 16 * bt + kl
            for tl in range(2):
                reg = (bt * 128) + (kl * 2 + tl) * 4
                base = W_QB if tl == 0 else W_KB
                A(f'global_load_dwordx4 a[{reg}:{reg+3}], v{V_BO}, s[{base}:{base+1}] offset:{64*ksl} sc1')
    issue_batch(0)
    def ld(ksl, tl):
        bt = ksl >> 4; kl = ksl & 15
        reg = (bt * 128) + (kl * 2 + tl) * 4
        base = W_QB if tl == 0 else W_KB
        A(f'global_load_dwordx4 a[{reg}:{reg+3}], v{V_BO}, s[{base}:{base+1}] offset:{64*ksl} sc1')
    for ksl in range(16, 30):
        ld(ksl, 0); ld(ksl, 1)
    for k in range(0, 8, 2): A(f'v_mov_b64 v[{ACC+k}:{ACC+k+1}], 0')
    def afr(ksl):
        b = AF + 4 * (ksl & 3)
        return [f'ds_read_b64_tr_b16 v[{b+2*q}:{b+2*q+1}], v{V_AR} offset:{ksl*1024 + q*512}' for q in range(2)]
    for ksl in range(3):
        for ins in afr(ksl): A(ins)
    issued = 60
    for ksl in range(32):
        if ksl + 3 < 32:
            for ins in afr(ksl + 3): A(ins)
        rem_l = min(3, 31 - ksl) * 2
        A(f's_waitcnt lgkmcnt({rem_l})')
        need = 2 * (ksl + 1)
        A(f's_waitcnt vmcnt({issued - need})')
        b = AF + 4 * (ksl & 3)
        for tl in range(2):
            bt = ksl >> 4; kl = ksl & 15
            reg = (bt * 128) + (kl * 2 + tl) * 4
            A(f'v_mfma_f32_16x16x32_bf16 v[{ACC+4*tl}:{ACC+4*tl+3}], v[{b}:{b+3}], a[{reg}:{reg+3}], v[{ACC+4*tl}:{ACC+4*tl+3}]')
        if ksl == 1:
            ld(30, 0); ld(30, 1); issued += 2
        if ksl == 2:
            ld(31, 0); ld(31, 1); issued += 2
    A('s_nop 7')
    A(f'ds_write_b128 v{V_RW}, v[{ACC}:{ACC+3}]')
    A(f'ds_write_b128 v{V_RW}, v[{ACC+4}:{ACC+7}] offset:1024')
    A('s_waitcnt lgkmcnt(0)')
    A('s_barrier')
    st(A, 5)
    Lf = A.label('Lw2_fin')
    A(f's_cmp_ge_u32 {W}, 2'); A(f's_cbranch_scc1 {Lf}')
    for k in range(4):
        A(f'ds_read_b128 v[{RD+4*k}:{RD+4*k+3}], v{V_RR} offset:{2048*k}')
    A('s_waitcnt lgkmcnt(0)')
    for rr in range(4):
        A(f'v_add_f32 v{RD+rr}, v{RD+rr}, v{RD+4+rr}')
        A(f'v_add_f32 v{RD+8+rr}, v{RD+8+rr}, v{RD+12+rr}')
        A(f'v_add_f32 v{RD+rr}, v{RD+rr}, v{RD+8+rr}')
    def rnd(r_):
        A(f'v_cvt_pk_bf16_f32 v{r_}, v{r_}, v{r_}')
        A(f'v_and_b32 v{r_}, 0xffff0000, v{r_}')
    for rr in range(4):
        r_ = RD + rr
        rnd(r_)
        src = XB + (rr >> 1)
        if rr & 1: A(f'v_and_b32 v{T0}, 0xffff0000, v{src}')
        else: A(f'v_lshlrev_b32 v{T0}, 16, v{src}')
        A(f'v_add_f32 v{r_}, v{r_}, v{T0}')
        rnd(r_)
        src = XB + 2 + (rr >> 1)
        if rr & 1: A(f'v_and_b32 v{T0}, 0xffff0000, v{src}')
        else: A(f'v_lshlrev_b32 v{T0}, 16, v{src}')
        A(f'v_add_f32 v{r_}, v{r_}, v{T0}')
    A(f'v_cvt_pk_bf16_f32 v{RD}, v{RD}, v{RD+1}')
    A(f'v_cvt_pk_bf16_f32 v{RD+1}, v{RD+2}, v{RD+3}')
    A(f'global_store_dwordx2 v{V_XO}, v[{RD}:{RD+1}], s[{W_OUTB}:{W_OUTB+1}]')
    A(f'{Lf}:')
    A('s_barrier')
    st(A, 6, flush=True)
    A(f's_add_u32 s{W_SEG}, s{W_SEG}, 7')
    A(f's_branch {Lloop}')
    A(f'{Ldone}:')
```

```python
WS_XN = 0x0000000
WS_Y  = 0x0200000
WS_Q  = 0x0400000
WS_K  = 0x1400000
WS_VT = 0x2400000
WS_O  = 0x3400000
WS_HH = 0x4400000
WS_BO = 0x4C00000
WS_KM = 0x4E00000
WS_VM = 0x5200000
WS_SY = 0x5A00000
WS_P1 = WS_SY + 0x10000
WS_MR = 0x5B00000
WS_TS = 0x5C00000
FLG_CHAIN = 0
FLG_KV = 0x1000
FLG_Q = 0x2000
FLG_H = 0x3000
FLG_B = 0x4000
FLG_O = 0x5000
```

```python
import sys
from asmlib import *
from layout import *
from k_common import *
import k_prep, k_chain, k_gemm, k_w2

NAME = 'parallel_sum__memory_aug_recurrent_mem_tr__mixer_channel_mlp__prompt'
HDR = open('cdna_kernels/%s.s.ref' % NAME).read().split('; Override launch geometry')[0]

def gen_main(A, name, opts):
    kernel_header(A, name)
    Lexit = A.label('Lmain_exit')
    role_assign(A, Lexit, k_chain.L_ROLE)
    Lworker = A.label('Lworker')
    A(f's_cmp_lg_u32 s{S_G}, 0')
    A(f's_cbranch_scc1 {Lworker}')
    if opts.get('force_slow'):
        A(f's_mov_b32 s{S_FAST}, 0')
    if opts.get('nochain'):
        A(f's_branch {Lexit}')
    else:
        ch = k_chain.Chain(A, prof=opts.get('prof', False), nsteps=opts.get('nsteps', 64), opts=opts)
        ch.gen(Lexit)
    A(f'{Lworker}:')
    if not opts.get('now1'):
        k_gemm.PROF = bool(opts.get('gprof'))
        k_gemm.gen_w1(A)
    if not opts.get('now2'):
        k_w2.PROF = bool(opts.get('w2prof'))
        k_w2.gen_w2(A)
    A(f'{Lexit}:')
    A('s_endpgm')
    kernel_desc(A, name, 512, 96, 256)

def gen(opts):
    launches = [('prep_kernel', 256, 256, 0), ('main_kernel', 256, 256, 163840)]
    hdr = HDR
    for (k, g, b, l) in launches:
        hdr += f'; @launch kernel={k} grid=({g},1,1) block=({b},1,1) lds={l}\n'
    body = Asm()
    body('.amdgcn_target "amdgcn-amd-amdhsa--gfx950"')
    k_prep.gen_prep(body, 'prep_kernel')
    gen_main(body, 'main_kernel', opts)
    return hdr + body.text()

if __name__ == '__main__':
    out = sys.argv[1] if len(sys.argv) > 1 else 'k.s'
    opts = {}
    for o in sys.argv[2:]:
        k, _, v_ = o.partition('=')
        opts[k] = int(v_) if v_ else True
    open(out, 'w').write(gen(opts))
    print('wrote', out)
```
